```python
import torch

def _softmax(x, axis=-1):
    return torch.softmax(x, dim=axis)
def _gelu(x):
    return torch.nn.functional.gelu(x, approximate="tanh")
def _silu(x):
    return torch.nn.functional.silu(x)
def _sigmoid(x):
    return torch.sigmoid(x)
def _layernorm(x, axis=-1, eps=1e-5):
    m = x.mean(dim=axis, keepdim=True)
    v = x.var(dim=axis, keepdim=True, unbiased=False)
    return (x - m) / torch.sqrt(v + eps)
def _scatter_add(tgt, idx, src, axis=0):
    return tgt.clone().index_add_(axis, idx, src)
def _segment_sum(src, seg, n):
    out = torch.zeros((n,) + src.shape[1:], dtype=src.dtype)
    return out.index_add_(0, seg, src)
def _pad(x, pw):
    flat = tuple(v for pair in reversed(pw) for v in pair)
    return torch.nn.functional.pad(x, flat)

kernel_name = 'recurrent_scan__gqa_block_cached__glu_gated_bilinear__prompt'

def setup_inputs():

    _w = (lambda a: (lambda t: t.to(torch.bfloat16) if t.is_floating_point() else t)(torch.as_tensor(a)))
    def _A_setup():
        B, Sq, D = 1, 2048, 640
        Hq, Hkv, Sk, Dh = 32, 32, 2048, 128
        assert Hq % Hkv == 0, (Hq, Hkv)
        return {
            "x": _w((lambda *s: torch.randn(*s, dtype=torch.bfloat16) * 0.05)(B, Sq, D)),
            "k_cache": _w((lambda *s: torch.randn(*s, dtype=torch.bfloat16) * 1.6)(B, Hkv, Sk, Dh)),
            "v_cache": _w((lambda *s: torch.randn(*s, dtype=torch.bfloat16) * 1.6)(B, Hkv, Sk, Dh)),
            "wq": _w((lambda *s: torch.randn(*s, dtype=torch.bfloat16) * 1.6)(D, Hq * Dh) * (D ** -0.5)),
            "wo": _w((lambda *s: torch.randn(*s, dtype=torch.bfloat16) * 1.6)(Hq * Dh, D) * ((Hq * Dh) ** -0.5)),
        }
    _A_in = _A_setup()

    def _B_setup():
        B, S, D, F = 1, 2048, 640, 1728
        return {
            "x": _w((lambda *s: torch.randn(*s, dtype=torch.bfloat16) * 0.05)(B, S, D)),
            "w_gate": _w((lambda *s: torch.randn(*s, dtype=torch.bfloat16) * 0.2)(D, F) * (D ** -0.5)),
            "w_up": _w((lambda *s: torch.randn(*s, dtype=torch.bfloat16) * 0.2)(D, F) * (D ** -0.5)),
            "w_down": _w((lambda *s: torch.randn(*s, dtype=torch.bfloat16) * 0.2)(F, D) * (F ** -0.5)),
        }
    _B_in = _B_setup()

    return {
        "A_x": _A_in["x"],
        "A_k_cache": _A_in["k_cache"],
        "A_v_cache": _A_in["v_cache"],
        "A_wq": _A_in["wq"],
        "A_wo": _A_in["wo"],
        "B_x": _B_in["x"],
        "B_w_gate": _B_in["w_gate"],
        "B_w_up": _B_in["w_up"],
        "B_w_down": _B_in["w_down"],
    }

def reference(A_x, A_k_cache, A_v_cache, A_wq, A_wo, B_x, B_w_gate, B_w_up, B_w_down):
    def _A_ref(x, k_cache, v_cache, wq, wo):
        B, Sq, D = x.shape
        Hq, Dh = 32, 128
        Hkv = k_cache.shape[1]
        rep = Hq // Hkv
        q = (lambda x, *d: x.permute(*d))((x @ wq).reshape(B, Sq, Hq, Dh), 0, 2, 1, 3)
        k = (lambda x, n, axis: torch.repeat_interleave(x, n, dim=axis))(k_cache, rep, axis=1)
        v = (lambda x, n, axis: torch.repeat_interleave(x, n, dim=axis))(v_cache, rep, axis=1)
        scores = torch.einsum("bhqd,bhkd->bhqk", q, k) * (Dh ** -0.5)
        p = _softmax(scores, axis=-1)
        o = torch.einsum("bhqk,bhkd->bhqd", p, v)
        return (lambda x, *d: x.permute(*d))(o, 0, 2, 1, 3).reshape(B, Sq, Hq * Dh) @ wo

    def _B_ref(x, w_gate, w_up, w_down):
        g = torch.einsum("bsd,df->bsf", x, w_gate)
        u = torch.einsum("bsd,df->bsf", x, w_up)
        h = g * u
        return torch.einsum("bsf,fd->bsd", h, w_down)

    x = A_x
    xn = _layernorm(x, axis=-1)
    s = _A_ref(xn, A_k_cache, A_v_cache, A_wq, A_wo)
    g = _silu(_B_ref(xn, B_w_gate, B_w_up, B_w_down))
    return x + s * g
```

```python
import re

REG = re.compile(r'^(-|abs\()?([vas])(\d+|\[(\d+):(\d+)\])\)?$')
TRANS = ("v_exp_f32", "v_log_f32", "v_rcp_f32", "v_rsq_f32", "v_sqrt_f32", "v_sin_f32", "v_cos_f32")

def regs_of(op):
    op = op.strip()
    if op in ("vcc", "exec", "m0", "scc"): return [op]
    if op in ("vcc_lo", "vcc_hi"): return ["vcc"]
    m = REG.match(op)
    if not m: return []
    k = m.group(2)
    if m.group(4) is not None: return [f"{k}{i}" for i in range(int(m.group(4)), int(m.group(5)) + 1)]
    return [f"{k}{m.group(3)}"]

class I:
    def __init__(s, text, tag=None):
        s.text = text.strip(); s.tag = tag
        t = s.text.split(";")[0].strip()
        s.R = set(); s.W = set(); s.srcC = set(); s.srcAB = set(); s.passes = 0; s.states = 1
        s.lds_dma = False; s.store = False
        if t.endswith(":") or t.startswith(".") or not t:
            s.kind = "label"; s.op = t; s.states = 0; return
        p = t.split(None, 1); s.op = op = p[0]
        args = [a.strip() for a in re.split(r",(?![^\[]*\])", p[1])] if len(p) > 1 else []
        if args:
            last = args[-1].split()
            mods = last[1:]; args[-1] = last[0]
        else: mods = []
        s.mods = mods
        rr = [regs_of(a) for a in args]
        flat = lambda l: set(x for y in l for x in y)
        if op.startswith("v_mfma"):
            s.kind = "mfma"; s.W = set(rr[0]); s.srcAB = flat(rr[1:3]); s.srcC = set(rr[3]); s.R = s.srcAB | s.srcC
            s.passes = 8 if "32x32" in op else 4
        elif op.startswith("ds_"):
            s.kind = "ds"
            if op.startswith("ds_write"): s.R = flat(rr)
            else: s.W = set(rr[0]); s.R = flat(rr[1:])
        elif op.startswith(("buffer_", "global_")):
            s.kind = "vmem"
            if op in ("buffer_wbl2", "buffer_inv"): pass
            elif "lds" in mods or "load_lds" in op: s.R = flat(rr) | {"m0"}; s.lds_dma = True
            elif "_load" in op: s.W = set(rr[0]); s.R = flat(rr[1:])
            elif "atomic" in op and "sc0" in mods: s.W = set(rr[0]); s.R = flat(rr)
            else:
                s.R = flat(rr); s.store = True
                s.sdata = set(rr[0]) if op.startswith("buffer_") else set(rr[1])
        elif op == "s_waitcnt": s.kind = "wait"
        elif op == "s_barrier": s.kind = "barrier"
        elif op == "s_nop": s.kind = "nop"; s.states = int(args[0]) + 1
        elif op.startswith(("s_branch", "s_cbranch", "s_endpgm", "s_setprio", "s_sleep")): s.kind = "branch"
        elif op.startswith(("s_load", "s_memtime", "s_memrealtime")):
            s.kind = "smem"; s.W = set(rr[0]); s.R = flat(rr[1:])
        elif op.startswith("s_"):
            s.kind = "salu"
            if op.startswith("s_cmp"): s.R = flat(rr); s.W = {"scc"}
            else:
                s.W = set(rr[0]); s.R = flat(rr[1:])
                if "saveexec" in op: s.W |= {"exec"}
        elif op.startswith("v_"):
            s.kind = "trans" if op.replace("_e32", "").replace("_e64", "") in TRANS else "valu"
            if op.startswith("v_permlane") and "swap" in op: s.W = flat(rr); s.R = flat(rr)
            elif op.startswith(("v_add_co", "v_addc_co", "v_sub_co")): s.W = flat(rr[:2]); s.R = flat(rr[2:])
            else:
                s.W = set(rr[0]); s.R = flat(rr[1:])
                if op.startswith(("v_fmac", "v_dot2c", "v_writelane")): s.R |= s.W
            s.dpp = any(m.startswith(("row_", "quad_perm", "wave_")) for m in mods)
        else: raise ValueError("unknown instruction " + t)
    def __repr__(s): return s.text

def L(text, tag=None):
    return [I(x, tag) for x in text.strip().split("\n") if x.strip()]

def isv(r): return r[0] in "va" and r not in ("vcc",)

def check_hazards(tr, name=""):
    errs = []
    n = len(tr)
    def need(i, j, k, why):
        d = sum(tr[x].states for x in range(i + 1, j))
        if d < k: errs.append(f"{name}[{i}->{j}] {why}: need {k} have {d}: '{tr[i]}' -> '{tr[j]}'")
    for j, c in enumerate(tr):
        if c.kind in ("label", "nop", "wait", "barrier", "branch"): continue
        d = 0; i = j - 1
        while i >= 0 and d < 21:
            p = tr[i]
            valu_p = p.kind in ("valu", "trans")
            valu_c = c.kind in ("valu", "trans")
            if p.kind == "mfma":
                full = {4: 8, 8: 12}[p.passes]
                if c.kind == "mfma":
                    if p.W & c.srcAB: need(i, j, full, "mfma D->mfma AB")
                    if p.W & c.srcC and not (p.W == c.srcC and p.passes == c.passes): need(i, j, full - 2, "mfma D->mfma C overlap")
                    if p.W & c.W and not (p.W & c.srcC): need(i, j, full - 2, "mfma D->mfma D waw")
                elif valu_c or c.kind in ("ds", "vmem"):
                    if p.W & (c.R | c.W): need(i, j, full, "mfma D->use")
                    if valu_c and p.srcC & c.W: need(i, j, {4: 3, 8: 7}[p.passes], "mfma C war")
            if valu_p:
                vw = {r for r in p.W if isv(r)}
                sw = p.W - vw
                if c.kind == "mfma" and vw & c.R: need(i, j, 2, "valu->mfma")
                if c.kind == "mfma" and "exec" in sw: need(i, j, 4, "exec->mfma")
                if p.kind == "trans" and c.kind == "valu" and vw & c.R: need(i, j, 1, "trans->valu")
                if valu_c and c.op.startswith("v_permlane") and vw & c.R: need(i, j, 2, "valu->permlane")
                if valu_c and c.dpp and vw & c.R: need(i, j, 2, "valu->dpp")
                if valu_c and c.op.startswith(("v_readlane", "v_readfirstlane")) and vw & c.R: need(i, j, 1, "valu->readlane")
                if valu_c and sw & c.R: need(i, j, 4 if c.op.startswith(("v_readlane", "v_writelane")) else 2, "valu sgpr->valu")
                if c.kind == "vmem" and sw & c.R: need(i, j, 5, "valu sgpr->vmem")
                if c.kind in ("salu", "smem") and sw & c.R: need(i, j, 1, "valu sgpr->salu")
                if p.op.startswith("v_dot") and vw & (c.R | c.W) and not (c.op == p.op): need(i, j, 3, "dot->other")
            if p.kind == "salu" and "m0" in p.W and (c.lds_dma or (valu_c and "m0" in c.R)): need(i, j, 1, "m0->use")
            if p.kind == "vmem" and p.store and len(p.sdata) >= 3 and p.sdata & c.W: need(i, j, 2 if valu_c else 1, "store data war")
            d += p.states; i -= 1
    return errs

def parse_wait(t):
    v = re.search(r"vmcnt\((\d+)\)", t); l = re.search(r"lgkmcnt\((\d+)\)", t)
    return (int(v.group(1)) if v else None, int(l.group(1)) if l else None)

def check_counters(tr, name=""):
    errs = []; vm = []; lg = []
    for j, c in enumerate(tr):
        if c.kind == "wait":
            v, l = parse_wait(c.text)
            if v is not None: vm = vm[len(vm) - v:] if v < len(vm) else vm
            if l is not None:
                if l > 0 and any(x.kind == "smem" for x in lg): errs.append(f"{name}[{j}] counted lgkm wait with smem outstanding")
                lg = lg[len(lg) - l:] if l < len(lg) else lg
            if v == 0: vm = []
            if l == 0: lg = []
            continue
        for q in (vm, lg):
            for p in q:
                if p.W & (c.R | c.W): errs.append(f"{name}[{j}] '{c}' touches outstanding '{p}'")
        if c.kind == "vmem": vm.append(c)
        if c.kind in ("ds", "smem"): lg.append(c)
        if len(vm) > 63: errs.append(f"{name}[{j}] vmcnt overflow")
    return errs

def resolve_waits(tr):
    out = list(tr)
    for cname, kinds, cap in (("lgkmcnt", ("ds", "smem"), 15), ("vmcnt", ("vmem",), 63)):
        q = []; drop = set()
        ph = f"{cname}(?)"
        idx = [i for i, c in enumerate(out) if c.kind == "wait" and ph in c.text]
        nxt = {a: b for a, b in zip(idx, idx[1:] + [len(out)])}
        for i, c in enumerate(out):
            if c.kind == "wait":
                if ph in c.text:
                    used = set()
                    for x in out[i + 1:nxt[i]]: used |= x.R | x.W
                    last = -1
                    for k, p in enumerate(q):
                        if p.W & used: last = k
                    if last < 0: drop.add(i); continue
                    cnt = min(len(q) - 1 - last, cap)
                    out[i] = I(c.text.replace(ph, f"{cname}({cnt})"), c.tag)
                    q = q[len(q) - cnt:] if cnt else []
                else:
                    v, l = parse_wait(c.text); w = l if cname == "lgkmcnt" else v
                    if w is not None and w < len(q): q = q[len(q) - w:] if w else []
            elif c.kind in kinds: q.append(c)
        out = [c for i, c in enumerate(out) if i not in drop]
    return out

def roll(tr, first, per, count):
    pre = [c for c in tr if c.tag < first]
    post = [c for c in tr if c.tag >= first + per * count]
    trips = [[c.text for c in tr if first + per * t <= c.tag < first + per * (t + 1)] for t in range(count)]
    for t in range(1, count):
        if trips[t] != trips[0]:
            for a, b in zip(trips[0], trips[t]):
                if a != b: raise AssertionError(f"trip {t} differs: '{a}' vs '{b}'")
            raise AssertionError(f"trip {t} length differs")
    body = [c for c in tr if first <= c.tag < first + per]
    return pre, body, post

def kd(name, vgpr=512, accum=256, sgpr=102):
    return f""".amdhsa_kernel {name}
  .amdhsa_next_free_vgpr {vgpr}
  .amdhsa_next_free_sgpr {sgpr}
  .amdhsa_accum_offset {accum}
  .amdhsa_group_segment_fixed_size 0
  .amdhsa_kernarg_size 96
  .amdhsa_user_sgpr_count 2
  .amdhsa_user_sgpr_kernarg_segment_ptr 1
  .amdhsa_system_sgpr_workgroup_id_x 1
.end_amdhsa_kernel"""

def fix_hazards(tr, name=""):
    tr = list(tr)
    while True:
        errs = check_hazards(tr, name)
        if not errs: return tr
        ins = {}
        for e in errs:
            m = re.search(r"\[(\d+)->(\d+)\].*need (\d+) have (\d+)", e)
            j = int(m.group(2)); ins[j] = max(ins.get(j, 0), int(m.group(3)) - int(m.group(4)))
        j = min(ins)
        tr.insert(j, I(f"s_nop {ins[j]-1}", tr[j].tag))

def text(tr): return "\n".join(("" if c.kind == "label" else "  ") + c.text for c in tr)
```

```python
from asmlib import *

NT = 32
def rO(dt, qt): b = (dt*4+qt)*4; return f"a[{b}:{b+3}]"
def rQ(qt, s): b = V_Q + (qt*4+s)*4; return f"v[{b}:{b+3}]"
def rK(st, s): b = 192 + (st*4+s)*4; return f"a[{b}:{b+3}]"
def rV(st, i): b = 224 + (st*4+i)*4; return f"a[{b}:{b+3}]"
def rVh(st, i, h): b = 224 + (st*4+i)*4 + 2*h; return f"a[{b}:{b+1}]"
V_ONES = 4; V_L = 8; V_NEGM = 24; V_S = 40; V_LS = 72
V_KA = 76; V_VA = 80; V_DK = 88; V_DV = 92; V_T = 96; V_P = 128; V_Q = 192
def vr(b, n=4): return f"v[{b}:{b+n-1}]"
def bS(st, qt): return V_S + (st*4+qt)*4
def bP(par, qt, ks): return V_P + ((par*4+qt)*2+ks)*4
S_KSRD = 8; S_VSRD = 12; S_KOFF = 16; S_VOFF = 17; S_LDSW = 18; S_CNT = 19
MF = "v_mfma_f32_16x16x32_bf16"

class Cfg:
    mq = (0, 2)
    G0 = 7
    dma = (6, 22)
    rpos = (12, 14, 18, 20)
    t0pos = (24, 26, 28, 30)
    t1pos = (1, 3, 5, 8)
    wpos = (15, 23, 31)
    bar = 11
    ring = 4
    kbase = 0; vbase = 65536; rot = 0
    zero_first = True
    last_dma = NT - 1
    snake = False
    dmacap = 0
    over = 99
    barper = 1
    nodma = False; nobar = False
    def __init__(s, **kw):
        for k, v in kw.items():
            assert hasattr(s, k), k
            setattr(s, k, v)

def dma_k(tile, p, c): return f"buffer_load_dwordx4 v{V_DK+p}, s[{S_KSRD}:{S_KSRD+3}], s{S_KOFF} offen offset:{p*1024} lds"
def dma_v(tile, p, c): return f"buffer_load_dwordx4 v{V_DV+(p&1)}, s[{S_VSRD}:{S_VSRD+3}], s{S_VOFF} offen offset:{p*1024} lds"
def m0_k(tile, c): return f"s_add_u32 m0, s{S_LDSW}, {c.kbase + ((tile + c.rot) % c.ring)*16384}"
def m0_v(tile, c): return f"s_add_u32 m0, s{S_LDSW}, {c.vbase + ((tile + c.rot) % c.ring)*16384}"
def rd_k(tile, kt, s, c): return f"ds_read_b128 {rK(kt&1, s)}, v{V_KA+s} offset:{((tile + c.rot) % c.ring)*16384 + kt*4096}"
def rd_v(tile, dt, ks, h, c): return f"ds_read_b64_tr_b16 {rVh((dt>>1)&1, (dt&1)*2+ks, h)}, v{V_VA+dt} offset:{((tile + c.rot) % c.ring)*16384 + (32*ks+16*h)*256}"

def main_trace(c):
    nones = len(c.mq) * 2
    per_seg = [[] for _ in range(4)]
    ones = [(qt, ks) for qt in c.mq for ks in range(2)]
    for n, o in enumerate(ones): per_seg[n * 4 // max(nones, 1)].append(o)
    slots = []
    base = {}
    for j in range(-1, NT):
        for i in range(4):
            base[(j, i)] = len(slots)
            ms = []
            for qt in range(4):
                for s_ in range(4):
                    s = 3 - s_ if (c.snake and qt & 1) else s_
                    d = vr(bS(i & 1, qt)); cc = vr(V_NEGM + 4*qt) if s_ == 0 else d
                    ms.append(f"{MF} {d}, {rK(i&1, s)}, {rQ(qt, s)}, {cc}" if j + 1 < NT else None)
            for dl in range(2):
                dt = 2*i + dl
                for qt in range(4):
                    for ks_ in range(2):
                        ks = 1 - ks_ if (c.snake and qt & 1) else ks_
                        ms.append(f"{MF} {rO(dt, qt)}, {rV(i&1, dl*2+ks)}, {vr(bP(j&1, qt, ks))}, {0 if (j == 0 and ks_ == 0) else rO(dt, qt)}" if j >= 0 else None)
            for (qt, ks) in per_seg[i]:
                l = vr(V_L + 4*qt)
                ms.append(f"{MF} {l}, {vr(V_ONES)}, {vr(bP(j&1, qt, ks))}, {0 if (j == 0 and ks == 0) else l}" if j >= 0 else None)
            for m in ms: slots.append(dict(m=m, pre=[], mem=[], valu=[], tag=j, E=False))
    n = len(slots)
    ready = {}
    for j in range(-1, NT):
        for i in range(4):
            b = base[(j, i)]
            if j + 1 < NT:
                for e in range(16):
                    qt, r = e >> 2, e & 3
                    g = b + c.G0 + 2*e
                    sv = bS(i & 1, qt) + r
                    slots[g]["valu"].append(f"v_exp_f32 v{sv}, v{sv}"); slots[g]["E"] = True
                    q = ready.setdefault(g + 1, [])
                    if r & 1:
                        pd = bP((j+1) & 1, qt, i >> 1) + 2*(i & 1) + (r >> 1)
                        q.append(("C", f"v_cvt_pk_bf16_f32 v{pd}, v{sv-1}, v{sv}"))
                    if qt not in c.mq: q.append(("A", f"v_add_f32 v{V_LS+qt}, v{V_LS+qt}, v{sv}"))
            tj, ti = (j + 1, i + 1) if i < 3 else (j + 2, 0)
            if tj < NT:
                for s in range(4): slots[b + c.rpos[s]]["mem"].append(rd_k(tj, ti, s, c))
            vj, vi = (j, i + 1) if i < 3 else (j + 1, 0)
            if 0 <= vj < NT:
                for x in range(4): slots[b + c.t0pos[x]]["mem"].append(rd_v(vj, 2*vi, x >> 1, x & 1, c))
            if j >= 0:
                for x in range(4): slots[b + c.t1pos[x]]["mem"].append(rd_v(j, 2*i + 1, x >> 1, x & 1, c))
            for w in c.wpos: slots[b + w]["pre"].append("s_waitcnt lgkmcnt(?)")
            for x in range(2):
                p = (i & 1)*2 + x
                tile = j + 3 if i < 2 else j + 2
                if tile > c.last_dma or c.nodma: continue
                g = b + c.dma[x]
                slots[g]["mem"].append((dma_k if i < 2 else dma_v)(tile, p, c)); slots[g]["dma"] = True
                if p == 0:
                    slots[b + 2]["pre"].append((m0_k if i < 2 else m0_v)(tile, c))
                    so = S_KOFF if i < 2 else S_VOFF
                    slots[b + 4]["pre"].append(f"s_add_u32 s{so}, s{so}, 16384")
            if i == 3 and j + 1 < NT:
                slots[b + c.bar]["bar"] = True
    qC, qA = [], []
    for g in range(n):
        for k, t in ready.get(g, []): (qC if k == "C" else qA).append(t)
        s = slots[g]
        cap = 0 if s["E"] else c.dmacap if s.get("dma") else 2 - len(s["mem"])
        if not s["E"] and not s.get("dma") and len(qC) + len(qA) - cap > c.over: cap += 1
        while cap > 0 and (qC or qA):
            s["valu"].append((qC or qA).pop(0)); cap -= 1
    assert not qC and not qA
    tr = []; ndma_in_period = 0; cur = None
    for s in slots:
        if s["tag"] != cur: cur = s["tag"]; ndma_in_period = 0
        t = s["tag"]
        if s["m"]: tr.append(I(s["m"], t))
        for x in s["pre"]: tr.append(I(x, t))
        if s.get("bar"):
            tr.append(I(f"s_waitcnt vmcnt({ndma_in_period})", t))
            if not c.nobar: tr.append(I("s_barrier", t))
        for x in s["mem"]:
            tr.append(I(x, t))
            if s.get("dma"): ndma_in_period += 1
        for x in s["valu"]: tr.append(I(x, t))
    return tr

def setup_addr(c, lane="v1"):
    t0, t1, t2 = V_T, V_T+1, V_T+2
    o = [f"v_and_b32 v{t0}, 15, {lane}", f"v_lshrrev_b32 v{t1}, 4, {lane}"]
    o.append(f"v_xor_b32 v{t2}, v{t0}, v{t1}")
    for s in range(4):
        o += [f"v_xor_b32 v{V_KA+s}, {4*s}, v{t2}", f"v_lshlrev_b32 v{V_KA+s}, 4, v{V_KA+s}",
              f"v_lshl_add_u32 v{V_KA+s}, v{t0}, 8, v{V_KA+s}"]
        if c.kbase: o.append(f"v_add_u32 v{V_KA+s}, {c.kbase}, v{V_KA+s}")
    t3, t4 = V_T+3, V_T+4
    o += [f"v_lshrrev_b32 v{t3}, 2, {lane}", f"v_and_b32 v{t4}, 3, {lane}", f"v_lshlrev_b32 v{t4}, 3, v{t4}",
          f"v_lshl_add_u32 v{t4}, v{t3}, 8, v{t4}", f"v_add_u32 v{t4}, {c.vbase}, v{t4}", f"v_and_b32 v{t3}, 7, v{t3}"]
    for dt in range(8):
        o += [f"v_xor_b32 v{V_VA+dt}, {dt}, v{t3}", f"v_lshl_add_u32 v{V_VA+dt}, v{V_VA+dt}, 5, v{t4}"]
    for p in range(4):
        o += [f"v_xor_b32 v{V_DK+p}, {4*p}, v{t2}", f"v_lshlrev_b32 v{V_DK+p}, 4, v{V_DK+p}",
              f"v_lshl_add_u32 v{V_DK+p}, v{t1}, 8, v{V_DK+p}"]
    for p in range(2):
        o += [f"v_add_u32 v{V_DV+p}, {4*p}, v{t1}", f"v_lshlrev_b32 v{V_DV+p}, 1, v{V_DV+p}", f"v_xor_b32 v{V_DV+p}, v{V_DV+p}, v{t0}",
              f"v_lshlrev_b32 v{V_DV+p}, 4, v{V_DV+p}", f"v_lshl_add_u32 v{V_DV+p}, v{t1}, 8, v{V_DV+p}"]
    o += [f"v_and_b32 v{t3}, 3, {lane}", f"v_cmp_eq_u32 vcc, 0, v{t3}", f"v_mov_b32 v{t4}, 0x3f803f80"]
    for i in range(4): o.append(f"v_cndmask_b32 v{V_ONES+i}, 0, v{t4}, vcc")
    return o

def allreduce_g(op, x, t):
    return [f"v_mov_b32 v{t}, v{x}", f"v_permlane32_swap_b32 v{x}, v{t}", f"{op} v{x}, v{x}, v{t}",
            f"v_mov_b32 v{t}, v{x}", f"v_permlane16_swap_b32 v{x}, v{t}", f"{op} v{x}, v{x}, v{t}"]

def interleave(lists):
    out = []
    for k in range(max(map(len, lists))):
        for l in lists:
            if k < len(l): out.append(l[k])
    return out

def first_max(c):
    o = ["s_waitcnt lgkmcnt(0)"]
    for qt in range(4):
        d = vr(bS(1, qt))
        for s in range(4): o.append(f"{MF} {d}, {rK(0, s)}, {rQ(qt, s)}, {0 if s == 0 else d}")
    ch = []
    for qt in range(4):
        b = bS(1, qt); m = V_NEGM + 4*qt
        l = [f"v_max3_f32 v{b}, v{b}, v{b+1}, v{b+2}", f"v_max_f32 v{b}, v{b}, v{b+3}"] + allreduce_g("v_max_f32", b, b + 1)
        l += [f"v_sub_f32 v{m+r}, 0, v{b}" for r in range(4)]
        ch.append(l)
    return o + interleave(ch)

def init_acc(c):
    o = [f"v_mov_b32 v{V_LS+i}, 0" for i in range(4)]
    return o

def epilogue(c, srd, soff, voff):
    o = []
    ch = []
    for qt in range(4):
        if qt in c.mq: ch.append([f"v_rcp_f32 v{V_LS+qt}, v{V_L+4*qt}"])
        else: ch.append(allreduce_g("v_add_f32", V_LS+qt, V_T+qt) + [f"v_rcp_f32 v{V_LS+qt}, v{V_LS+qt}"])
    o += interleave(ch)
    n = 0
    for qt in range(4):
        for u in range(4):
            t = V_S + (n % 4)*8; p = V_P + (n % 8)*4; n += 1
            for h in range(2):
                for r in range(4): o.append(f"v_accvgpr_read_b32 v{t+4*h+r}, a{((2*u+h)*4+qt)*4+r}")
            for x in range(8): o.append(f"v_mul_f32 v{t+x}, v{t+x}, v{V_LS+qt}")
            for x in range(4): o.append(f"v_cvt_pk_bf16_f32 v{p+x}, v{t+2*x}, v{t+2*x+1}")
            o.append(f"buffer_store_dwordx4 {vr(p)}, v{voff}, s[{srd}:{srd+3}], s{soff} offen offset:{u*1024}")
        if qt < 3: o.append(f"s_add_u32 s{soff}, s{soff}, 131072")
    return o
```

```python
from asmlib import *
from layout import *
NLN = 128; NPK = 182
def gen(T=False):
    o = []; A = lambda s: o.extend(L(s if isinstance(s, str) else "\n".join(s), 0))
    A(f"""s_cmp_ge_u32 s2, {NLN+NPK}
s_cbranch_scc1 L0_end
s_load_dwordx2 s[20:21], s[0:1], {A_WS}
v_and_b32 v1, 63, v0
v_lshrrev_b32 v2, 6, v0
s_nop 0
v_readfirstlane_b32 s30, v2""")
    A(stamp(0, T))
    A(f"s_cmp_ge_u32 s2, {NLN}\ns_cbranch_scc1 L0_pack")
    ln = []; B = lambda s: ln.extend(L(s if isinstance(s, str) else "\n".join(s), 0))
    B(f"""s_load_dwordx2 s[4:5], s[0:1], {A_X}
v_lshrrev_b32 v3, 4, v0
v_and_b32 v4, 15, v0
v_mul_u32_u24 v5, 1280, v3
v_lshl_add_u32 v5, v4, 4, v5
s_mul_i32 s16, s2, 20480
s_waitcnt lgkmcnt(0)""")
    B(srd(4, 4, 2048*1280)); B(srd(8, 20, SZ_XN, WS_XN))
    for i in range(5): B(f"buffer_load_dwordx4 v[{8+4*i}:{11+4*i}], v5, s[4:7], s16 offen offset:{256*i}")
    B("v_lshlrev_b32 v6, 8, v4\nv_lshl_add_u32 v6, v3, 4, v6\nv_mov_b32 v72, 0\nv_mov_b32 v73, 0")
    for i in range(5):
        B(f"s_waitcnt vmcnt({4-i})")
        for r in range(4):
            x = 8+4*i+r; d = 32 + 8*i + 2*r
            B(f"v_lshlrev_b32 v{d}, 16, v{x}\nv_and_b32 v{d+1}, 0xffff0000, v{x}\nv_add_f32 v72, v72, v{d}\nv_add_f32 v73, v73, v{d+1}")
    def rowsum(x):
        return [f"v_add_f32 v{x}, v{x}, v{x} {m}" for m in ("quad_perm:[1,0,3,2] row_mask:0xf bank_mask:0xf", "quad_perm:[2,3,0,1] row_mask:0xf bank_mask:0xf",
                                                           "row_half_mirror row_mask:0xf bank_mask:0xf", "row_mirror row_mask:0xf bank_mask:0xf")]
    B("v_add_f32 v72, v72, v73"); B(rowsum(72))
    B(f"v_mul_f32 v72, {fbits(1/640)}, v72\nv_mov_b32 v74, 0\nv_mov_b32 v75, 0")
    for e in range(40): B(f"v_sub_f32 v{32+e}, v{32+e}, v72\nv_fmac_f32 v{74+(e&1)}, v{32+e}, v{32+e}")
    B("v_add_f32 v74, v74, v75"); B(rowsum(74))
    B(f"v_mov_b32 v75, {fbits(1e-5)}\nv_fmac_f32 v75, {fbits(1/640)}, v74\nv_rsq_f32 v75, v75\nv_mul_f32 v75, {fbits(QSCALE)}, v75")
    for i in range(5):
        for r in range(4):
            d = 32 + 8*i + 2*r
            B(f"v_mul_f32 v{d}, v{d}, v75\nv_mul_f32 v{d+1}, v{d+1}, v75\nv_cvt_pk_bf16_f32 v{8+4*i+r}, v{d}, v{d+1}")
        B(f"buffer_store_dwordx4 v[{8+4*i}:{11+4*i}], v6, s[8:11], s16 offen")
        if i < 4: B("s_add_u32 s16, s16, 4096")
    B("s_branch L0_fin")
    pk = []; C = lambda s: pk.extend(L(s if isinstance(s, str) else "\n".join(s), 0))
    C(f"""L0_pack:
s_load_dwordx2 s[4:5], s[0:1], {A_WD}
s_load_dwordx2 s[12:13], s[0:1], {A_WO}
s_sub_u32 s17, s2, {NLN}
s_mov_b32 s6, {1728*1280}
s_mov_b32 s19, {54*5120}
s_mov_b32 s24, {WS_WD}
s_waitcnt lgkmcnt(0)
s_cmp_ge_u32 s17, 54
s_cselect_b32 s4, s12, s4
s_cselect_b32 s5, s13, s5
s_cselect_b32 s6, {4096*1280}, s6
s_cselect_b32 s18, 54, 0
s_cselect_b32 s19, {128*5120}, s19
s_cselect_b32 s24, {WS_WO}, s24
s_mov_b32 s7, 0x20000
s_sub_u32 s17, s17, s18
s_mul_i32 s16, s17, 40960
s_mul_i32 s25, s30, 10240
s_add_u32 s16, s16, s25
v_lshlrev_b32 v3, 4, v1""")
    C(srd(8, 20, WS_WO + SZ_WO))
    for i in range(10):
        if i % 4 == 0:
            C(f"s_add_u32 m0, s25, {i*1024}");
            if i: C("s_add_u32 s16, s16, 4096")
            else: C("s_nop 0")
        C(f"buffer_load_dwordx4 v3, s[4:7], s16 offen offset:{(i%4)*1024} lds")
    C("""v_lshrrev_b32 v4, 2, v1
v_mul_u32_u24 v4, 1280, v4
v_and_b32 v5, 3, v1
v_lshl_add_u32 v4, v5, 3, v4
s_mul_i32 s26, s30, 320
v_add_u32 v4, s26, v4
s_mul_i32 s27, s17, 5120
s_add_u32 s27, s27, s24
s_lshl_b32 s26, s30, 1
s_mul_i32 s26, s26, s19
s_add_u32 s27, s27, s26
s_waitcnt vmcnt(0)
s_barrier""")
    for t in range(10):
        C(f"ds_read_b64_tr_b16 v[{8+4*t}:{9+4*t}], v4 offset:{32*t}\nds_read_b64_tr_b16 v[{10+4*t}:{11+4*t}], v4 offset:{32*t+16*1280}")
    C("s_waitcnt lgkmcnt(0)")
    for t in range(10):
        if t == 4 or t == 9: C("s_add_u32 s28, s27, 4096")
        if t == 5: C("s_add_u32 s27, s27, s19")
        if t % 5 == 4: C(f"buffer_store_dwordx4 v[{8+4*t}:{11+4*t}], v3, s[8:11], s28 offen")
        else: C(f"buffer_store_dwordx4 v[{8+4*t}:{11+4*t}], v3, s[8:11], s27 offen offset:{(t%5)*1024}")
    fin = L("L0_fin:", 0)
    if T: fin += L("\n".join(["s_waitcnt vmcnt(0)"] + stamp(1, T) + stamp_out(2, 0, "L0_end")), 0)
    p1 = fix_hazards(o + ln); p2 = fix_hazards(pk + fin)
    for p in (p1, p2):
        e = check_counters(p); assert not e, e
    return text(p1) + "\n" + text(p2) + "\nL0_end:\n  s_endpgm"
LAUNCH = f"grid=({NLN+NPK},1,1) block=(256,1,1) lds=40960"
KD = dict(vgpr=80, accum=80)
```

```python
import sys
from attn import *
from layout import *
S_WQ = 20; S_WG = 24; S_WU = 28; S_WS = 32; S_HS = 36
S_QOFF = 40; S_GOFF = 41; S_XOFF = 42; S_WAVE = 43; S_HEAD = 44; S_QB = 45; S_OOFF = 46; S_HOFF = 47
V_L16 = 3
V_QA = 104; V_GA = 108; V_DQ = 112; V_DG = 113
NP = 10
def accQ(qt, s, T): b = 128 + ((qt*4+s)*2+T)*4; return f"v[{b}:{b+3}]"
def accG(u, nt, qt): b = 64*u + (nt*4+qt)*4; return f"a[{b}:{b+3}]"
def rX(par, qt, ks): b = 128 + (par*8+qt*2+ks)*4; return f"a[{b}:{b+3}]"
def rW(st, ks): b = 192 + (st*2+ks)*4; return f"a[{b}:{b+3}]"
def rWh(st, ks, h): b = 192 + (st*2+ks)*4 + 2*h; return f"a[{b}:{b+1}]"
TILES = [("G", u, nt) for nt in range(4) for u in range(2)] + [("Q", s, T) for s in range(4) for T in range(2)]

def rd_w(t, ti, ks, h):
    kind, a, b = TILES[ti]; st = ti & 3; sl = (t % 4)*16384
    if kind == "Q": return f"ds_read_b64_tr_b16 {rWh(st, ks, h)}, v{V_QA+a} offset:{sl + (32*ks+4*h)*256 + 8*b}"
    return f"ds_read_b64_tr_b16 {rWh(st, ks, h)}, v{V_GA+b} offset:{sl + ks*8192 + h*512 + a*2048}"
def ld_x(t, n):
    qt, ks = n >> 1, n & 1
    pre = [f"s_add_u32 s{S_XOFF}, s{S_XOFF}, {20480 if qt else 2048 - 3*20480 & 0xffffffff}"] if ks == 0 and (t or qt) else []
    return pre, f"buffer_load_dwordx4 {rX(t&1, qt, ks)}, v{V_L16}, s[{S_WS}:{S_WS+3}], s{S_XOFF} offen offset:{ks*1024}"
def dma_w(t, n):
    sl = (t % 4)*16384
    if n < 4:
        pre = [f"s_add_u32 m0, s{S_LDSW}, {sl}"] if n == 0 else []
        if t or n: pre.append(f"s_add_u32 s{S_QOFF}, s{S_QOFF}, {31744 if n else 64*8192 - 3*31744}")
        return pre, f"buffer_load_dwordx4 v{V_DQ}, s[{S_WQ}:{S_WQ+3}], s{S_QOFF} offen offset:{n*1024} lds"
    u, p = (n - 4) >> 1, n & 1
    pre = [f"s_add_u32 m0, s{S_LDSW}, {65536 + sl + u*2048}"] if p == 0 else []
    if n == 4 and t: pre.append(f"s_add_u32 s{S_GOFF}, s{S_GOFF}, {64*3456}")
    r = S_WU if u else S_WG
    return pre, f"buffer_load_dwordx4 v{V_DG+p}, s[{r}:{r+3}], s{S_GOFF} offen offset:{p*1024} lds"
def dma_kv(c, which, tile, p):
    pre = []
    if p == 0:
        pre.append((m0_k if which == "K" else m0_v)(tile, c))
        if tile: pre.append(f"s_add_u32 s{S_KOFF}, s{S_KOFF}, 16384")
    return pre, (dma_k if which == "K" else dma_v)(tile, p, c)

def proj_setup():
    t0, t1, t2, t3 = V_T, V_T+1, V_T+2, V_T+3
    o = [f"v_lshrrev_b32 v{t0}, 4, v1", f"v_bfe_u32 v{t1}, v1, 2, 2", f"v_and_b32 v{t2}, 3, v1"]
    o += [f"v_lshlrev_b32 v{t3}, 2, v{t0}", f"v_xor_b32 v{t3}, v{t3}, v1", f"v_and_b32 v{t3}, 15, v{t3}", f"v_lshlrev_b32 v{t3}, 4, v{t3}",
          f"v_lshl_add_u32 v{V_DQ}, v{t0}, 13, v{t3}"]
    for p in range(2):
        o += [f"v_and_b32 v{t3}, 1, v{t0}", f"v_or_b32 v{t3}, {2*p}, v{t3}", f"v_lshlrev_b32 v{t3}, 1, v{t3}", f"v_xor_b32 v{t3}, v{t3}, v1",
              f"v_and_b32 v{t3}, 7, v{t3}", f"v_lshlrev_b32 v{t3}, 4, v{t3}", f"v_lshrrev_b32 v{V_DG+p}, 3, v1",
              f"v_mul_u32_u24 v{V_DG+p}, 3456, v{V_DG+p}", f"v_add_u32 v{V_DG+p}, v{V_DG+p}, v{t3}"]
        if p: o.append(f"v_add_u32 v{V_DG+p}, {8*3456 - 1024}, v{V_DG+p}")
    return o
def proj_setup2():
    t0, t1, t2, t3, t4 = V_T, V_T+1, V_T+2, V_T+3, V_T+4
    o = [f"v_lshl_add_u32 v{t3}, v{t0}, 3, v{t1}", f"v_lshlrev_b32 v{t3}, 8, v{t3}", f"v_lshl_add_u32 v{t3}, v{t2}, 4, v{t3}"]
    for s in range(4): o += [f"v_xor_b32 v{V_QA+s}, {s}, v{t1}", f"v_lshl_add_u32 v{V_QA+s}, v{V_QA+s}, 6, v{t3}"]
    o += [f"v_and_b32 v{t4}, 1, v{t0}", f"v_lshl_add_u32 v{t3}, v{t4}, 3, v{t1}", f"v_lshlrev_b32 v{t3}, 7, v{t3}", f"v_lshl_add_u32 v{t3}, v{t2}, 3, v{t3}",
          f"v_lshrrev_b32 v{t0}, 1, v{t0}", f"v_lshl_add_u32 v{t3}, v{t0}, 12, v{t3}", f"v_add_u32 v{t3}, 65536, v{t3}",
          f"v_lshrrev_b32 v{t1}, 1, v{t1}", f"v_lshl_add_u32 v{t4}, v{t4}, 1, v{t1}"]
    for nt in range(4): o += [f"v_xor_b32 v{V_GA+nt}, {nt}, v{t4}", f"v_lshl_add_u32 v{V_GA+nt}, v{V_GA+nt}, 5, v{t3}"]
    return o

def proj_trace(c, npre):
    LEAD = 2
    tr = []; vm = []
    vm += [("W", 0)]*8 + [("x", 0)]*8 + [("W", 1)]*8 + [("x", 1)]*8
    for s in range(2, npre): vm += [("W", s)]*8
    def cnt(label):
        last = max(i for i, x in enumerate(vm) if x == label); return len(vm) - 1 - last
    for t in range(NP):
        tag = -20 + t
        mem = []
        if 1 <= t < NP - 1: mem += [(("x", t+1),) + ld_x(t+1, n) for n in range(8)]
        if npre <= t + 2 < NP: mem += [(("W", t+2),) + dma_w(t+2, n) for n in range(8)]
        if t == 8: mem += [(("W", 10),) + dma_kv(c, "K", 0, p) for p in range(4)] + [(("W", 10),) + dma_kv(c, "V", 0, p) for p in range(4)]
        if t == 9: mem += [(("W", 11),) + dma_kv(c, "K", 1, p) for p in range(4)]
        pos = {1 + 6*i: m for i, m in enumerate(mem)}
        pre = {}
        for g, m in pos.items():
            for k, x in enumerate(m[1]): pre.setdefault(max(g - 4 + 2*k, 0) if g > 1 else 0, []).append(x)
        for ti in range(16):
            kind, a, b = TILES[ti]
            nti = ti + LEAD; nt_ = t
            if nti >= 16: nti -= 16; nt_ += 1
            reads = [rd_w(nt_, nti, x >> 1, x & 1) for x in range(4)] if nt_ < NP else []
            for m in range(8):
                g = ti*8 + m; qt = m >> 1; ks = (m & 1) ^ (qt & 1)
                d = accQ(qt, a, b) if kind == "Q" else accG(a, b, qt)
                tr.append(I(f"{MF} {d}, {rW(ti&3, ks)}, {rX(t&1, qt, ks)}, {0 if (t == 0 and m & 1 == 0) else d}", tag))
                for x in pre.get(g, []): tr.append(I(x, tag))
                if m == 7: tr.append(I("s_waitcnt lgkmcnt(?)", tag))
                if g == (16 - LEAD)*8 - 1:
                    tr.append(I(f"s_waitcnt vmcnt({cnt(('W', t+1))})", tag)); tr.append(I("s_barrier", tag))
                if g == 125 and t + 1 < NP: tr.append(I(f"s_waitcnt vmcnt({cnt(('x', t+1))})", tag))
                if g in pos: tr.append(I(pos[g][2], tag)); vm.append(pos[g][0])
                if m & 1 == 0 and reads: tr.append(I(reads[m >> 1], tag))
    return tr

def proj_epilogue():
    o = []
    n = 0
    for qt in range(4):
        for u in range(2):
            t = V_S + (n % 2)*16; p = V_NEGM + (n % 4)*4; n += 1
            for h in range(2):
                for r in range(4):
                    o.append(f"v_accvgpr_read_b32 v{t+4*h+r}, a{((2*u+h)*4+qt)*4+r}")
                    o.append(f"v_accvgpr_read_b32 v{t+8+4*h+r}, a{64+((2*u+h)*4+qt)*4+r}")
            for x in range(8): o.append(f"v_mul_f32 v{t+x}, v{t+x}, v{t+8+x}")
            for x in range(4): o.append(f"v_cvt_pk_bf16_f32 v{p+x}, v{t+2*x}, v{t+2*x+1}")
            o.append(f"buffer_store_dwordx4 {vr(p)}, v{V_L16}, s[{S_HS}:{S_HS+3}], s{S_HOFF} offen offset:{u*1024}")
        if qt < 3: o.append(f"s_add_u32 s{S_HOFF}, s{S_HOFF}, {54*1024}")
    for i in range(63, -1, -1): o.append(f"v_cvt_pk_bf16_f32 v{192+i}, v{128+2*i}, v{129+2*i}")
    return o

def gen(c, T=False, npre=3):
    h = []; A = lambda s: h.extend(L(s if isinstance(s, str) else "\n".join(s), -50))
    A(f"""s_cmp_ge_u32 s2, 256
s_cbranch_scc1 L1_end
s_load_dwordx4 s[4:7], s[0:1], {A_K}
s_load_dwordx2 s[{S_WQ}:{S_WQ+1}], s[0:1], {A_WQ}
s_load_dwordx2 s[{S_WG}:{S_WG+1}], s[0:1], {A_WG}
s_load_dwordx2 s[{S_WU}:{S_WU+1}], s[0:1], {A_WU}
s_load_dwordx2 s[{S_WS}:{S_WS+1}], s[0:1], {A_WS}""")
    A(stamp(0, T))
    A(f"""v_and_b32 v1, 63, v0
v_lshrrev_b32 v2, 6, v0
v_lshlrev_b32 v{V_L16}, 4, v1
v_readfirstlane_b32 s{S_WAVE}, v2
s_and_b32 s{S_HEAD}, s2, 7
s_lshl_b32 s{S_HEAD}, s{S_HEAD}, 2
s_bfe_u32 s{S_QB}, s2, 0x20003
s_add_u32 s{S_HEAD}, s{S_HEAD}, s{S_QB}
s_lshr_b32 s{S_QB}, s2, 5""")
    A(proj_setup())
    A(f"""s_lshl_b32 s{S_LDSW}, s{S_WAVE}, 12
s_lshl_b32 s{S_QOFF}, s{S_WAVE}, 17
s_lshl_b32 s3, s{S_HEAD}, 8
s_add_u32 s{S_QOFF}, s{S_QOFF}, s3
s_mul_i32 s{S_GOFF}, s{S_WAVE}, {16*3456}
s_lshl_b32 s3, s{S_HEAD}, 7
s_add_u32 s{S_GOFF}, s{S_GOFF}, s3
s_lshl_b32 s3, s{S_QB}, 2
s_add_u32 s3, s3, s{S_WAVE}
s_mul_i32 s{S_XOFF}, s3, {4*20480}
s_mul_i32 s{S_HOFF}, s3, {4*54*1024}
s_lshl_b32 s{S_OOFF}, s3, 19
s_lshl_b32 s3, s{S_HEAD}, 11
s_add_u32 s{S_HOFF}, s{S_HOFF}, s3
s_lshl_b32 s3, s{S_HEAD}, 12
s_add_u32 s{S_OOFF}, s{S_OOFF}, s3
s_add_u32 s{S_OOFF}, s{S_OOFF}, {WS_O}
s_lshl_b32 s{S_KOFF}, s{S_HEAD}, 19
s_add_u32 s{S_KOFF}, s{S_KOFF}, s{S_LDSW}
s_mov_b32 s{S_VOFF}, s{S_KOFF}
s_waitcnt lgkmcnt(0)""")
    A(srd(S_WQ, S_WQ, 640*8192) + srd(S_WG, S_WG, 640*3456) + srd(S_WU, S_WU, 640*3456) + srd(S_WS, S_WS, WS_O + SZ_O))
    A(srd(S_HS, S_WS, SZ_H, WS_H) + srd(S_KSRD, 4, 1 << 24) + srd(S_VSRD, 6, 1 << 24))
    A(f"""s_cmp_lt_u32 s{S_HEAD}, 27
s_cselect_b32 s{S_WG+2}, s{S_WG+2}, 0
s_cselect_b32 s{S_WU+2}, s{S_WU+2}, 0
s_cselect_b32 s{S_HS+2}, s{S_HS+2}, 0""")
    def issue(lst):
        for pre, x in lst: A(pre + [x])
    issue(dma_w(0, n) for n in range(8)); issue(ld_x(0, n) for n in range(8))
    issue(dma_w(1, n) for n in range(8)); issue(ld_x(1, n) for n in range(8))
    for s in range(2, npre): issue(dma_w(s, n) for n in range(8))
    A(proj_setup2()); A(setup_addr(c)); A(init_acc(c))
    A(f"s_waitcnt vmcnt({16 + 8*(npre-2)})\ns_barrier")
    A(stamp(1, T))
    A([rd_w(0, ti, x >> 1, x & 1) for ti in range(2) for x in range(4)] + ["s_waitcnt lgkmcnt(?)"])
    tr = h + proj_trace(c, npre)
    tr += L("\n".join(stamp(2, T) + [rd_k(0, 0, s, c) for s in range(4)] + proj_epilogue() + stamp(3, T) + first_max(c)), -5)
    tr += main_trace(c)
    tr += L("\n".join(stamp(4, T) + epilogue(c, S_WS, S_OOFF, V_L16)), 99)
    if T: tr += L("\n".join(["s_waitcnt vmcnt(0)"] + stamp(5, T) + stamp_out(6, 1, "L1_end")), 99)
    tr = fix_hazards(resolve_waits(tr))
    errs = check_counters(tr) + check_hazards(tr)
    assert not errs, "\n".join(errs[:20])
    pre, body, post = roll(tr, 1, 4, 7)
    idx = [i for i, x in enumerate(body) if x.kind == "mfma"]
    body.insert(idx[-4] + 1, I(f"s_sub_u32 s{S_CNT}, s{S_CNT}, 1"))
    idx = [i for i, x in enumerate(body) if x.kind == "mfma"]
    body.insert(idx[-3] + 1, I(f"s_cmp_lg_u32 s{S_CNT}, 0"))
    assert not any(x.kind == "salu" for x in body[idx[-3] + 2:])
    return f"{text(pre)}\n  s_mov_b32 s{S_CNT}, 7\n.p2align 6\nL1_loop:\n{text(body)}\n  s_cbranch_scc1 L1_loop\n{text(post)}\nL1_end:\n  s_endpgm"
LAUNCH = "grid=(256,1,1) block=(256,1,1) lds=131072"
KD = dict(vgpr=512, accum=256)
if __name__ == "__main__":
    s = gen(Cfg(rot=2, snake=True)); open("k1.txt", "w").write(s); print(len(s.split("\n")))
```

```python
from asmlib import *
from layout import *
import math
MF = "v_mfma_f32_16x16x32_bf16"
S_A = 4; S_B = 8; S_X = 12; S_OUT = 16; S_WS = 20; S_AOFF = 24; S_BOFF = 25; S_WAVE = 26; S_MB = 27; S_NB = 28
V_A = 2; V_BH = 5; V_BO = 9; V_XO = 13; V_W = 236; V_R = 239; V_X = 240
NF = 7; NS = 16; NBUF = 3
def fa(b, nt, ks): r = 16 + b*72 + (ks*5+nt)*4; return f"v[{r}:{r+3}]"
def fb(b, j, ks): r = 16 + b*72 + 40 + (j*2+ks)*4; return f"v[{r}:{r+3}]"
def acc(f, nt, j): r = 80*f + (j*5+nt)*4; return r
def switch_to_s():
    return (srd(S_A, S_WS, 128*5120, WS_WO)[:2] + [f"s_mul_i32 s3, s{S_NB}, {128*5120}", f"s_add_u32 s{S_A}, s{S_A}, s3", f"s_addc_u32 s{S_A+1}, s{S_A+1}, 0",
            f"s_mov_b32 s{S_A+2}, {128*5120}"] + srd(S_B, S_WS, SZ_O, WS_O)[:3] +
            [f"s_mul_i32 s{S_AOFF}, s{S_WAVE}, 10240", f"s_lshl_b32 s{S_BOFF}, s{S_MB}, 19", f"s_lshl_b32 s3, s{S_WAVE}, 11", f"s_add_u32 s{S_BOFF}, s{S_BOFF}, s3"])
def loads(i, pol):
    b = i % NBUF; vb = V_BH if i < NF else V_BO
    pre = []
    if i == NF: pre = switch_to_s()
    elif i > 0: pre = [f"s_add_u32 s{S_AOFF}, s{S_AOFF}, 40960", f"s_add_u32 s{S_BOFF}, s{S_BOFF}, 8192"]
    if i == NF - 1: pre += [f"s_cmp_eq_u32 s{S_WAVE}, 3", f"s_cselect_b32 s{S_B+2}, 0, s{S_B+2}"]
    la = [f"buffer_load_dwordx4 {fa(b, n % 5, n // 5)}, v{V_A + n // 4}, s[{S_A}:{S_A+3}], s{S_AOFF} offen offset:{(n % 4)*1024}" for n in range(10)]
    lb = [f"buffer_load_dwordx4 {fb(b, j, ks)}, v{vb+j}, s[{S_B}:{S_B+3}], s{S_BOFF} offen offset:{ks*1024}{pol}" for j in range(4) for ks in range(2)]
    order = lb + [la[0], la[5], la[1], la[6], la[2], la[7], la[3], la[8], la[4], la[9]]
    return pre, order
def gen(T=False, xmap=0, pol=""):
    o = []; A = lambda s: o.extend(L(s if isinstance(s, str) else "\n".join(s), 0))
    A(f"""s_cmp_ge_u32 s2, 256
s_cbranch_scc1 L2_end
s_load_dwordx2 s[{S_WS}:{S_WS+1}], s[0:1], {A_WS}
s_load_dwordx2 s[{S_X}:{S_X+1}], s[0:1], {A_X}
s_load_dwordx2 s[{S_OUT}:{S_OUT+1}], s[0:1], {A_OUT}""")
    A(stamp(0, T))
    A(f"""v_and_b32 v1, 63, v0
v_lshrrev_b32 v14, 6, v0
v_lshlrev_b32 v{V_A}, 4, v1
v_readfirstlane_b32 s{S_WAVE}, v14""")
    if xmap == 0:
        A(f"""s_bfe_u32 s{S_MB}, s2, 0x20001
s_lshl_b32 s{S_MB}, s{S_MB}, 3
s_lshr_b32 s3, s2, 5
s_add_u32 s{S_MB}, s{S_MB}, s3
s_and_b32 s{S_NB}, s2, 1
s_lshl_b32 s{S_NB}, s{S_NB}, 2
s_bfe_u32 s3, s2, 0x20003
s_add_u32 s{S_NB}, s{S_NB}, s3""")
    else:
        A(f"""s_and_b32 s{S_MB}, s2, 7
s_lshl_b32 s{S_MB}, s{S_MB}, 2
s_lshr_b32 s3, s2, 6
s_add_u32 s{S_MB}, s{S_MB}, s3
s_bfe_u32 s{S_NB}, s2, 0x30003""")
    A(f"v_add_u32 v{V_A+1}, 4096, v{V_A}\nv_add_u32 v{V_A+2}, 8192, v{V_A}")
    for j in range(4):
        A(f"v_add_u32 v15, {j}, v14\nv_and_b32 v15, 3, v15\nv_mul_u32_u24 v{V_BH+j}, {54*1024}, v15\nv_add_u32 v{V_BH+j}, v{V_BH+j}, v{V_A}\nv_lshl_add_u32 v{V_BO+j}, v15, 17, v{V_A}")
        if j: A(f"v_mul_u32_u24 v{V_W+j-1}, 30720, v15\nv_add_u32 v{V_W+j-1}, v{V_W+j-1}, v{V_A}")
    A(f"""v_mul_u32_u24 v{V_R}, 30720, v14
v_add_u32 v{V_R}, v{V_R}, v{V_A}
s_mul_i32 s{S_AOFF}, s{S_WAVE}, 10240
s_mul_i32 s{S_BOFF}, s{S_MB}, {4*54*1024}
s_lshl_b32 s3, s{S_WAVE}, 11
s_add_u32 s{S_BOFF}, s{S_BOFF}, s3
s_waitcnt lgkmcnt(0)""")
    A(srd(S_A, S_WS, 54*5120, WS_WD) + [f"s_mul_i32 s3, s{S_NB}, {54*5120}", f"s_add_u32 s{S_A}, s{S_A}, s3", f"s_addc_u32 s{S_A+1}, s{S_A+1}, 0"])
    A(srd(S_B, S_WS, SZ_H, WS_H) + srd(S_X, S_X, 2048*1280) + srd(S_OUT, S_OUT, 2048*1280))
    for i in range(NBUF - 1):
        pre, ld = loads(i, pol); A(pre + ld)
    A(f"""v_and_b32 v15, 15, v1
v_lshl_add_u32 v15, v14, 4, v15
v_mul_u32_u24 v{V_XO}, 1280, v15
v_lshrrev_b32 v15, 4, v1
v_lshl_add_u32 v{V_XO}, v15, 3, v{V_XO}
s_mul_i32 s29, s{S_MB}, {64*1280}
s_mul_i32 s3, s{S_NB}, 160
s_add_u32 s29, s29, s3""")
    xl = [f"buffer_load_dwordx2 v[{V_X+2*nt}:{V_X+2*nt+1}], v{V_XO}, s[{S_X}:{S_X+3}], s29 offen offset:{32*nt}" for nt in range(5)]
    def send(f): return [f"ds_write_b128 v{V_W+j-1}, a[{acc(f, nt, j)}:{acc(f, nt, j)+3}] offset:{((j-1)*10 + f*5 + nt)*1024}" for j in range(1, 4) for nt in range(5)]
    N = NF + NS
    for i in range(N):
        f = 1 if i < NF else 0; b = i % NBUF
        pre, ld = loads(i + NBUF - 1, pol) if i + NBUF - 1 < N else ([], [])
        if i == N - 2: ld = xl
        extra = send(1) if i == NF + 1 else []
        A(pre)
        o.append(I("s_waitcnt vmcnt(?)", 0))
        g = 0
        for nt in range(5):
            for j in range(4):
                for k in range(2):
                    ks = k ^ (j & 1); d = acc(f, nt, j); first = i in (0, NF) and k == 0
                    A(f"{MF} a[{d}:{d+3}], {fa(b, nt, ks)}, {fb(b, j, ks)}, {0 if first else f'a[{d}:{d+3}]'}")
                    if g % 2 == 0 and g // 2 < len(ld): A(ld[g // 2])
                    if g % 2 == 1 and g // 2 < len(extra): A(extra[g // 2])
                    if g % 8 == 7 and nt < 4: o.append(I("s_waitcnt vmcnt(?)", 0))
                    g += 1
    A(stamp(1, T))
    A(send(0)); A("s_waitcnt lgkmcnt(0)\ns_barrier")
    for n in range(30): A(f"ds_read_b128 v[{16+4*n}:{19+4*n}], v{V_R} offset:{n*1024}")
    for e in range(40): A(f"v_accvgpr_read_b32 v{140+e}, a{acc(e // 20, 0, 0) + e % 20}")
    A("s_waitcnt lgkmcnt(0)")
    for e in range(40): A(f"v_add_f32 v{140+e}, v{140+e}, v{16+e}\nv_add_f32 v{56+e}, v{56+e}, v{96+e}")
    for e in range(40): A(f"v_add_f32 v{140+e}, v{140+e}, v{56+e}")
    ic = 1.0 / QSCALE**2
    for e in range(20): A(f"v_mul_f32 v{16+e}, {fbits(-ic*math.log2(math.e))}, v{160+e}")
    for e in range(20): A(f"v_exp_f32 v{16+e}, v{16+e}")
    for e in range(20): A(f"v_add_f32 v{16+e}, 1.0, v{16+e}\nv_mul_f32 v{160+e}, {fbits(ic)}, v{160+e}")
    for e in range(20): A(f"v_rcp_f32 v{16+e}, v{16+e}")
    A("s_waitcnt vmcnt(0)")
    for e in range(20):
        x = V_X + e // 2
        A(f"v_mul_f32 v{160+e}, v{160+e}, v{16+e}")
        A(f"v_and_b32 v{40+e}, 0xffff0000, v{x}" if e & 1 else f"v_lshlrev_b32 v{40+e}, 16, v{x}")
    for e in range(20): A(f"v_fmac_f32 v{40+e}, v{140+e}, v{160+e}")
    for nt in range(5):
        A(f"v_cvt_pk_bf16_f32 v{64+2*nt}, v{40+4*nt}, v{41+4*nt}\nv_cvt_pk_bf16_f32 v{65+2*nt}, v{42+4*nt}, v{43+4*nt}")
        A(f"buffer_store_dwordx2 v[{64+2*nt}:{65+2*nt}], v{V_XO}, s[{S_OUT}:{S_OUT+3}], s29 offen offset:{32*nt}")
    if T: A(["s_waitcnt vmcnt(0)"] + stamp(2, T) + stamp_out(3, 2, "L2_end"))
    tr = fix_hazards(resolve_waits(o))
    errs = check_counters(tr); assert not errs, errs[:10]
    return text(tr) + "\nL2_end:\n  s_endpgm"
LAUNCH = "grid=(256,1,1) block=(256,1,1) lds=122880"
KD = dict(vgpr=416, accum=256)
```

```python
import math, struct
WS_XN = 0
WS_O = 4 << 20
WS_H = 24 << 20
WS_WD = 32 << 20
WS_WO = 36 << 20
WS_T = 200 << 20
SZ_XN = 128*20*1024; SZ_O = 128*128*1024; SZ_H = 128*54*1024; SZ_WD = 8*54*5*1024; SZ_WO = 8*128*5*1024
A_X, A_K, A_V, A_WQ, A_WO, A_BX, A_WG, A_WU, A_WD, A_OUT, A_DBG, A_WS = [8*i for i in range(12)]
QSCALE = math.log2(math.e) / math.sqrt(128.0)
def fbits(x): return "0x%08x" % struct.unpack("<I", struct.pack("<f", x))[0]
def srd(d, base, size, off=0):
    if off: o = [f"s_add_u32 s{d}, s{base}, {off}", f"s_addc_u32 s{d+1}, s{base+1}, 0"]
    elif d == base: o = []
    else: o = [f"s_mov_b32 s{d}, s{base}", f"s_mov_b32 s{d+1}, s{base+1}"]
    return o + [f"s_mov_b32 s{d+2}, {size}", f"s_mov_b32 s{d+3}, 0x20000"]
def stamp(i, on): return [f"s_memtime s[{60+4*i}:{61+4*i}]", f"s_memrealtime s[{62+4*i}:{63+4*i}]", "s_waitcnt lgkmcnt(0)"] if on else []
def stamp_out(n, kidx, end):
    o = ["s_load_dwordx2 s[92:93], s[0:1], 88", "s_waitcnt lgkmcnt(0)"] + srd(92, 92, 0x10000000)
    for i in range(n): o += [f"v_mov_b32 v{8+2*i}, s{60+4*i}", f"v_mov_b32 v{9+2*i}, s{62+4*i}"]
    o += ["s_lshl_b32 s96, s2, 6", f"s_add_u32 s96, s96, {WS_T + kidx*65536}", "v_mov_b32 v2, 0", "v_cmp_eq_u32 vcc, 0, v0",
          "s_and_saveexec_b64 s[98:99], vcc", f"s_cbranch_execz {end}"]
    for i in range(n): o.append(f"buffer_store_dwordx2 v[{8+2*i}:{9+2*i}], v2, s[92:95], s96 offen offset:{8*i}")
    return o + ["s_waitcnt vmcnt(0)"]
```

```python
import sys, k0, k1, k2
from asmlib import kd
from attn import Cfg
NAME = "recurrent_scan__gqa_block_cached__glu_gated_bilinear__prompt"
REF = open(f"cdna_kernels/{NAME}.s.ref").read().split("\n")
HEAD = "\n".join(l for l in REF[:13])
def assemble(parts):
    s = HEAD + "\n"
    for n, launch, body, k in parts: s += f"; @launch kernel={n} {launch}\n"
    s += '.amdgcn_target "amdgcn-amd-amdhsa--gfx950"\n.text\n'
    for n, launch, body, k in parts: s += f".globl {n}\n.p2align 8\n.type {n},@function\n{n}:\n{body}\n"
    s += '.section .rodata,"a"\n'
    for n, launch, body, k in parts: s += ".p2align 6\n" + kd(n, **k) + "\n"
    return s
def v1(T=False, cfg=None, k1kw={}, k2kw={}):
    cfg = cfg or Cfg(rot=2, snake=True)
    return assemble([("prep_kernel", k0.LAUNCH, k0.gen(T), k0.KD), ("attn_kernel", k1.LAUNCH, k1.gen(cfg, T, **k1kw), k1.KD),
                     ("outp_kernel", k2.LAUNCH, k2.gen(T, **k2kw), k2.KD)])
if __name__ == "__main__":
    open(f"cdna_kernels/{NAME}.s", "w").write(v1())
    open("v1_t.s", "w").write(v1(True))
```

```python
import build, k0, k1, k2
from attn import Cfg
cfg = Cfg(rot=2, snake=True)
P = [("prep_kernel", k0.LAUNCH, k0.gen(), k0.KD), ("attn_kernel", k1.LAUNCH, k1.gen(cfg), k1.KD), ("outp_kernel", k2.LAUNCH, k2.gen(), k2.KD)]
E = lambda i: (f"e{i}_kernel", "grid=(256,1,1) block=(256,1,1) lds=0", "  s_endpgm", dict(vgpr=8, accum=8))
open("x_a.s", "w").write(build.assemble(P))
open("x_b.s", "w").write(build.assemble(P + [E(0), E(1), E(2), E(3)]))
open("x_c.s", "w").write(build.assemble([E(0), E(1), E(2), E(3)] + P))
```

```python
import re

REG = re.compile(r'^(-|abs\()?([vas])(\d+|\[(\d+):(\d+)\])\)?$')
TRANS = ("v_exp_f32", "v_log_f32", "v_rcp_f32", "v_rsq_f32", "v_sqrt_f32", "v_sin_f32", "v_cos_f32")

def regs_of(op):
    op = op.strip()
    if op in ("vcc", "exec", "m0", "scc"): return [op]
    if op in ("vcc_lo", "vcc_hi"): return ["vcc"]
    m = REG.match(op)
    if not m: return []
    k = m.group(2)
    if m.group(4) is not None: return [f"{k}{i}" for i in range(int(m.group(4)), int(m.group(5)) + 1)]
    return [f"{k}{m.group(3)}"]

class I:
    def __init__(s, text, tag=None):
        s.text = text.strip(); s.tag = tag
        t = s.text.split(";")[0].strip()
        s.R = set(); s.W = set(); s.srcC = set(); s.srcAB = set(); s.passes = 0; s.states = 1
        s.lds_dma = False; s.store = False; s.label = None; s.lds = None; s.priv = False
        if t.endswith(":") or t.startswith(".") or not t:
            s.kind = "label"; s.op = t; s.states = 0; return
        p = t.split(None, 1); s.op = op = p[0]
        args = [a.strip() for a in re.split(r",(?![^\[]*\])", p[1])] if len(p) > 1 else []
        if args:
            last = args[-1].split()
            mods = last[1:]; args[-1] = last[0]
        else: mods = []
        s.mods = mods
        rr = [regs_of(a) for a in args]
        flat = lambda l: set(x for y in l for x in y)
        if op.startswith("v_mfma"):
            s.kind = "mfma"; s.W = set(rr[0]); s.srcAB = flat(rr[1:3]); s.srcC = set(rr[3]); s.R = s.srcAB | s.srcC
            s.passes = 8 if "32x32" in op else 4
        elif op.startswith("ds_"):
            s.kind = "ds"
            if op.startswith("ds_write"): s.R = flat(rr)
            else: s.W = set(rr[0]); s.R = flat(rr[1:])
        elif op.startswith(("buffer_", "global_")):
            s.kind = "vmem"
            if op in ("buffer_wbl2", "buffer_inv"): pass
            elif "lds" in mods or "load_lds" in op: s.R = flat(rr) | {"m0"}; s.lds_dma = True
            elif "_load" in op: s.W = set(rr[0]); s.R = flat(rr[1:])
            elif "atomic" in op and "sc0" in mods: s.W = set(rr[0]); s.R = flat(rr)
            else:
                s.R = flat(rr); s.store = True
                s.sdata = set(rr[0]) if op.startswith("buffer_") else set(rr[1])
        elif op == "s_waitcnt": s.kind = "wait"
        elif op == "s_barrier": s.kind = "barrier"
        elif op == "s_nop": s.kind = "nop"; s.states = int(args[0]) + 1
        elif op.startswith(("s_branch", "s_cbranch", "s_endpgm", "s_setprio", "s_sleep")): s.kind = "branch"
        elif op.startswith(("s_load", "s_memtime", "s_memrealtime")):
            s.kind = "smem"; s.W = set(rr[0]); s.R = flat(rr[1:])
        elif op.startswith("s_"):
            s.kind = "salu"
            if op.startswith("s_cmp"): s.R = flat(rr); s.W = {"scc"}
            else:
                s.W = set(rr[0]); s.R = flat(rr[1:])
                if "saveexec" in op: s.W |= {"exec"}
        elif op.startswith("v_"):
            s.kind = "trans" if op.replace("_e32", "").replace("_e64", "") in TRANS else "valu"
            if op.startswith("v_permlane") and "swap" in op: s.W = flat(rr); s.R = flat(rr)
            elif op.startswith(("v_add_co", "v_addc_co", "v_sub_co")): s.W = flat(rr[:2]); s.R = flat(rr[2:])
            else:
                s.W = set(rr[0]); s.R = flat(rr[1:])
                if op.startswith(("v_fmac", "v_dot2c", "v_writelane")): s.R |= s.W
            s.dpp = any(m.startswith(("row_", "quad_perm", "wave_")) for m in mods)
        else: raise ValueError("unknown instruction " + t)
    def __repr__(s): return s.text

def L(text, tag=None):
    return [I(x, tag) for x in text.strip().split("\n") if x.strip()]

def isv(r): return r[0] in "va" and r not in ("vcc",)

def check_hazards(tr, name="", only=None):
    errs = []
    n = len(tr)
    def need(i, j, k, why):
        d = sum(tr[x].states for x in range(i + 1, j))
        if d < k: errs.append(f"{name}[{i}->{j}] {why}: need {k} have {d}: '{tr[i]}' -> '{tr[j]}'")
    for j, c in enumerate(tr) if only is None else [(only, tr[only])]:
        if c.kind in ("label", "nop", "wait", "barrier", "branch"): continue
        d = 0; i = j - 1
        while i >= 0 and d < 21:
            p = tr[i]
            valu_p = p.kind in ("valu", "trans")
            valu_c = c.kind in ("valu", "trans")
            if p.kind == "mfma":
                full = {4: 8, 8: 12}[p.passes]
                if c.kind == "mfma":
                    if p.W & c.srcAB: need(i, j, full, "mfma D->mfma AB")
                    if p.W & c.srcC and not (p.W == c.srcC and p.passes == c.passes): need(i, j, full - 2, "mfma D->mfma C overlap")
                    if p.W & c.W and not (p.W & c.srcC): need(i, j, full - 2, "mfma D->mfma D waw")
                elif valu_c or c.kind in ("ds", "vmem"):
                    if p.W & (c.R | c.W): need(i, j, full, "mfma D->use")
                    if valu_c and p.srcC & c.W: need(i, j, {4: 3, 8: 7}[p.passes], "mfma C war")
            if valu_p:
                vw = {r for r in p.W if isv(r)}
                sw = p.W - vw
                if c.kind == "mfma" and vw & c.R: need(i, j, 2, "valu->mfma")
                if c.kind == "mfma" and "exec" in sw: need(i, j, 4, "exec->mfma")
                if p.kind == "trans" and c.kind == "valu" and vw & c.R: need(i, j, 1, "trans->valu")
                if valu_c and c.op.startswith("v_permlane") and vw & c.R: need(i, j, 2, "valu->permlane")
                if valu_c and c.dpp and vw & c.R: need(i, j, 2, "valu->dpp")
                if valu_c and c.op.startswith(("v_readlane", "v_readfirstlane")) and vw & c.R: need(i, j, 1, "valu->readlane")
                if valu_c and sw & c.R: need(i, j, 4 if c.op.startswith(("v_readlane", "v_writelane")) else 2, "valu sgpr->valu")
                if c.kind == "vmem" and sw & c.R: need(i, j, 5, "valu sgpr->vmem")
                if c.kind in ("salu", "smem") and sw & c.R: need(i, j, 1, "valu sgpr->salu")
                if p.op.startswith("v_dot") and vw & (c.R | c.W) and not (c.op == p.op): need(i, j, 3, "dot->other")
            if p.kind == "salu" and "m0" in p.W and (c.lds_dma or (valu_c and "m0" in c.R)): need(i, j, 1, "m0->use")
            if p.kind == "vmem" and p.store and len(p.sdata) >= 3 and p.sdata & c.W: need(i, j, 2 if valu_c else 1, "store data war")
            d += p.states; i -= 1
    return errs

def parse_wait(t):
    v = re.search(r"vmcnt\((\d+)\)", t); l = re.search(r"lgkmcnt\((\d+)\)", t)
    return (int(v.group(1)) if v else None, int(l.group(1)) if l else None)

def check_counters(tr, name=""):
    errs = []; vm = []; lg = []
    for j, c in enumerate(tr):
        if c.kind == "wait":
            v, l = parse_wait(c.text)
            if v is not None: vm = vm[len(vm) - v:] if v < len(vm) else vm
            if l is not None:
                if l > 0 and any(x.kind == "smem" for x in lg): errs.append(f"{name}[{j}] counted lgkm wait with smem outstanding")
                lg = lg[len(lg) - l:] if l < len(lg) else lg
            if v == 0: vm = []
            if l == 0: lg = []
            continue
        for q in (vm, lg):
            for p in q:
                if p.W & (c.R | c.W): errs.append(f"{name}[{j}] '{c}' touches outstanding '{p}'")
        if c.kind == "vmem": vm.append(c)
        if c.kind in ("ds", "smem"): lg.append(c)
        if len(vm) > 63: errs.append(f"{name}[{j}] vmcnt overflow")
    return errs

def resolve_waits(tr):
    out = list(tr)
    for cname, kinds, cap in (("lgkmcnt", ("ds", "smem"), 15), ("vmcnt", ("vmem",), 63)):
        q = []; drop = set()
        ph = f"{cname}(?)"
        idx = [i for i, c in enumerate(out) if c.kind == "wait" and ph in c.text]
        nxt = {a: b for a, b in zip(idx, idx[1:] + [len(out)])}
        for i, c in enumerate(out):
            if c.kind == "wait":
                if ph in c.text:
                    used = set()
                    for x in out[i + 1:nxt[i]]: used |= x.R | x.W
                    last = -1
                    for k, p in enumerate(q):
                        if p.W & used: last = k
                    if last < 0: drop.add(i); continue
                    cnt = min(len(q) - 1 - last, cap)
                    out[i] = I(c.text.replace(ph, f"{cname}({cnt})"), c.tag)
                    q = q[len(q) - cnt:] if cnt else []
                else:
                    v, l = parse_wait(c.text); w = l if cname == "lgkmcnt" else v
                    if w is not None and w < len(q): q = q[len(q) - w:] if w else []
            elif c.kind in kinds: q.append(c)
        out = [c for i, c in enumerate(out) if i not in drop]
    return out

def roll(tr, first, per, count):
    pre = [c for c in tr if c.tag < first]
    post = [c for c in tr if c.tag >= first + per * count]
    trips = [[c.text for c in tr if first + per * t <= c.tag < first + per * (t + 1)] for t in range(count)]
    for t in range(1, count):
        if trips[t] != trips[0]:
            for a, b in zip(trips[0], trips[t]):
                if a != b: raise AssertionError(f"trip {t} differs: '{a}' vs '{b}'")
            raise AssertionError(f"trip {t} length differs")
    body = [c for c in tr if first <= c.tag < first + per]
    return pre, body, post

def kd(name, vgpr=512, accum=256, sgpr=102):
    return f""".amdhsa_kernel {name}
  .amdhsa_next_free_vgpr {vgpr}
  .amdhsa_next_free_sgpr {sgpr}
  .amdhsa_accum_offset {accum}
  .amdhsa_group_segment_fixed_size 0
  .amdhsa_kernarg_size 96
  .amdhsa_user_sgpr_count 2
  .amdhsa_user_sgpr_kernarg_segment_ptr 1
  .amdhsa_system_sgpr_workgroup_id_x 1
.end_amdhsa_kernel"""

def fix_hazards(tr, name=""):
    out = []
    for c in tr:
        win = out[-24:] + [c]
        k = 0
        for e in check_hazards(win, name, only=len(win) - 1):
            m = re.search(r"need (\d+) have (\d+)", e)
            k = max(k, int(m.group(1)) - int(m.group(2)))
        if k: out.append(I(f"s_nop {k-1}", c.tag))
        out.append(c)
    return out

def text(tr): return "\n".join(("" if c.kind == "label" else "  ") + c.text for c in tr)

def X(text, tag=None, label=None, lds=None, priv=False):
    i = I(text, tag); i.label = label; i.lds = lds; i.priv = priv
    return i

def resolve_labels(tr):
    out = []; q = []
    for c in tr:
        if c.kind == "wait" and "@" in c.text:
            names = re.search(r"@([^)]*)\)", c.text).group(1).split("|")
            last = max((k for k, p in enumerate(q) if getattr(p, "label", None) in names), default=-1)
            if last < 0: continue
            n = len(q) - 1 - last
            assert n <= 63, c.text
            c = I(re.sub(r"@[^)]*\)", f"{n})", c.text), c.tag)
        if c.kind == "wait":
            v, _ = parse_wait(c.text)
            if v is not None and v < len(q): q = q[len(q) - v:] if v else []
        elif c.kind == "vmem": q.append(c)
        out.append(c)
    return out

def check_lds(tr, name=""):
    errs = []; vm = []; lg = []; ops = []
    ov = lambda a, b: a[0] < b[1] and b[0] < a[1]
    for j, c in enumerate(tr):
        if c.kind == "wait":
            v, l = parse_wait(c.text)
            for q, n in ((vm, v), (lg, l)):
                if n is None: continue
                while len(q) > n:
                    e = q.pop(0)
                    if e: e[2] = 1
        elif c.kind == "barrier":
            ops = [e for e in ops if e[2] == 0]
        elif c.kind in ("vmem", "ds", "smem"):
            e = None
            r = getattr(c, "lds", None)
            if (c.kind == "ds" and not c.op.startswith(("ds_bpermute", "ds_swizzle")) or c.lds_dma) and r is None:
                errs.append(f"{name}[{j}] LDS op without range: {c}")
            if r:
                w = c.lds_dma or c.op.startswith("ds_write")
                for p in ops:
                    if (w or p[1]) and ov(r, p[0].lds):
                        if w and p[1] and getattr(c, "label", 0) == getattr(p[0], "label", 1): continue
                        if c.priv and p[0].priv and p[2] == 1: continue
                        errs.append(f"{name}[{j}] LDS order: '{p[0]}' {p[0].lds} -> '{c}' {r}")
                e = [c, w, 0]; ops.append(e)
            (vm if c.kind == "vmem" else lg).append(e)
    return errs
```

```python
import math, struct
from layout import A_X, A_K, A_V, A_WQ, A_WO, A_BX, A_WG, A_WU, A_WD, A_OUT, A_DBG, A_WS, QSCALE, fbits, srd, WS_T
MB = 1 << 20
WS_XN = 0
WS_FO = 3*MB
WS_FP = 3*MB + 65536
WS_H = 4*MB
WS_O = 12*MB
WS_WP = 32*MB
WS_P = 44*MB
WS_END = 64*MB
SZ_H = 27*262144; SZ_WP = 182*40960
NSTAMP = 16
def stamp(i, on):
    return ["s_memtime s[92:93]", "s_memrealtime s[94:95]", "s_waitcnt lgkmcnt(0)", f"s_mov_b32 s{60+2*i}, s92", f"s_mov_b32 s{61+2*i}, s94"] if on else []
def stamp_out(n, end):
    o = ["s_load_dwordx2 s[92:93], s[0:1], 88", "s_waitcnt lgkmcnt(0)"] + srd(92, 92, 0x10000000)
    for i in range(n): o += [f"v_mov_b32 v{8+2*i}, s{60+2*i}", f"v_mov_b32 v{9+2*i}, s{61+2*i}"]
    o += ["s_lshl_b32 s96, s2, 9", f"s_add_u32 s96, s96, {WS_T}", "v_lshlrev_b32 v2, 1, v0", "v_cmp_eq_u32 vcc, 0, v1",
          "s_and_saveexec_b64 s[98:99], vcc", f"s_cbranch_execz {end}"]
    for i in range(n): o.append(f"buffer_store_dwordx2 v[{8+2*i}:{9+2*i}], v2, s[92:95], s96 offen offset:{8*i}")
    return o + ["s_waitcnt vmcnt(0)"]
```

```python
import sys, math
from asmlib import *
from flayout import *
MF = "v_mfma_f32_16x16x32_bf16"
NT = 32; NP = 10; NF = 7; NS = 16
S_T = 4; S_KSRD = 8; S_VSRD = 12; S_KOFF = 16; S_VOFF = 17; S_LDSW = 18; S_CNT = 19
S_WQ = 20; S_WG = 24; S_WU = 28; S_WS = 32; S_HS = 36
S_QOFF = 40; S_GOFF = 41; S_XOFF = 42; S_WAVE = 43; S_HEAD = 44; S_QB = 45; S_OOFF = 46; S_HOFF = 47
S_DBG = 48; S_WP = 52; S_PSRC = 56; S_PDST = 57; S_MODE = 58; S_T2 = 59
S_AOFF = 40; S_BOFF = 41; S_ALDS = 42; S_FP = 56; S_POFF = 57; S_XSRD = 20; S_OUT = 24; S_ROFF = 28; S_PIN = 29; S_FO = 30; S_BAD = 31; S_T3 = 100
S_FOW = 96; S_FPW = 97
V_L16 = 3; V_ONES = 4; V_L = 8; V_NEGM = 24; V_S = 40; V_LS = 72
V_KA = 76; V_VA = 80; V_DK = 88; V_DV = 92; V_ONE0 = 94; V_L16B = 95; V_T = 96
V_QA = 104; V_GA = 108; V_DQ = 112; V_DG = 113; V_DP = 115; V_CA = 117; V_K1 = 118; V_AA = 119; V_FL = 122; V_XO = 123; V_Z = 124; V_ONEW = 125; V_CHK = 104
V_P = 128; V_Q = 192
def vr(b, n=4): return f"v[{b}:{b+n-1}]"
def ar(b, n=4): return f"a[{b}:{b+n-1}]"
def sr(b): return f"s[{b}:{b+3}]"
def rO(dt, qt): return ar((dt*4+qt)*4)
def rQ(qt, s): return vr(V_Q + (qt*4+s)*4)
def rK(st, s): return ar(192 + (st*4+s)*4)
def rV(st, i): return ar(224 + (st*4+i)*4)
def bS(st, qt): return V_S + (st*4+qt)*4
def bP(par, qt, ks): return V_P + ((par*4+qt)*2+ks)*4
def kslot(j): return (j % 4)*16384
def vslot(j): return (3 - j % 4)*16384
PACK = 131072
SPIN = 1 << 13

class Cfg:
    mq = (0, 2); G0 = 7; dma = (6, 22); rpos = (12, 14, 18, 20); t0pos = (24, 26, 28, 30); t1pos = (1, 3, 5, 8)
    wpos = (15, 23, 31); bar = 11; dmacap = 0; xpos = (10, 16, 32)
    T = False; osig = 3*40 + 39; opoll = 5*40 + 3; kvpol = ""
    def __init__(s, **kw):
        for k, v in kw.items():
            assert hasattr(s, k), k
            setattr(s, k, v)

class Slot:
    def __init__(s, m, tag): s.m = m; s.tag = tag; s.pre = []; s.mem = []; s.extra = []; s.valu = []; s.E = False; s.G = False
def linear(slots):
    tr = []
    for s in slots:
        for x in ([s.m] if s.m else []) + s.pre + s.mem + s.extra + s.valu:
            if isinstance(x, str): x = I(x)
            x.tag = s.tag; tr.append(x)
    return tr
def put_vmem(slots, g, op, back=(4, 2)):
    pre, x = own(op)
    for k, p in enumerate(pre): slots[g - back[k + len(back) - len(pre)] if len(pre) <= len(back) else g - 1].pre.append(p)
    slots[g].mem.append(x); slots[g].G = True
def own(op):
    pre, x = op; out = []
    for p in pre:
        p = I(p) if isinstance(p, str) else p
        p.owner = x; out.append(p)
    return out, x
def check_owner(tr):
    errs = []; last = {}; pend = {}
    for j, c in enumerate(tr):
        if c.kind == "vmem":
            for r in c.R:
                if r in pend and pend[r].owner is not c: errs.append(f"[{j}] '{c}' reads {r} set early by '{pend[r]}' for '{pend[r].owner}'")
                if r in ("m0", "s3") and getattr(last.get(r), "owner", None) is not None and last[r].owner.label != c.label:
                    errs.append(f"[{j}] '{c}' ({c.label}) reads {r} of group {last[r].owner.label}")
            pend = {r: p for r, p in pend.items() if p.owner is not c}
        for r in c.W:
            if r in pend and getattr(c, "owner", None) is not pend[r].owner: errs.append(f"[{j}] '{c}' overwrites {r} pending for '{pend[r].owner}'")
            last[r] = c
            if getattr(c, "owner", None) is not None: pend[r] = c
    return errs
def interleave(lists):
    return [l[k] for k in range(max(map(len, lists))) for l in lists if k < len(l)]
def allreduce_g(op, x, t):
    return [f"v_mov_b32 v{t}, v{x}", f"v_permlane32_swap_b32 v{x}, v{t}", f"{op} v{x}, v{x}, v{t}",
            f"v_mov_b32 v{t}, v{x}", f"v_permlane16_swap_b32 v{x}, v{t}", f"{op} v{x}, v{x}, v{t}"]

def dma_kv(c, which, tile, p, first=False):
    k = which == "K"; lo = kslot(tile) if k else 65536 + vslot(tile); so = S_KOFF if k else S_VOFF
    pre = []
    if p == 0:
        pre.append(f"s_add_u32 m0, s{S_LDSW}, {lo}")
        if tile: pre.append(f"s_add_u32 s{so}, s{so}, 16384")
    va = V_DK + p if k else V_DV + (p & 1)
    return pre, X(f"buffer_load_dwordx4 v{va}, {sr(S_KSRD if k else S_VSRD)}, s{so} offen offset:{p*1024}{c.kvpol} lds", label=f"{which}{tile}", lds=(lo, lo + 16384))
def rd_k(tile, kt, s):
    o = kslot(tile) + kt*4096
    return X(f"ds_read_b128 {rK(kt&1, s)}, v{V_KA+s} offset:{o}", lds=(o, o + 4096))
def rd_v(tile, dt, ks, h):
    o = vslot(tile) + (32*ks+16*h)*256
    return X(f"ds_read_b64_tr_b16 {ar(224 + (((dt>>1)&1)*4 + (dt&1)*2+ks)*4 + 2*h, 2)}, v{V_VA+dt} offset:{o}", lds=(65536 + o, 65536 + o + 4096))

def setup_dma():
    t0, t3 = V_T, V_T+3
    o = [f"v_lshrrev_b32 v{t0}, 4, v1",
         f"v_lshlrev_b32 v{t3}, 2, v{t0}", f"v_xor_b32 v{t3}, v{t3}, v1", f"v_and_b32 v{t3}, 15, v{t3}", f"v_lshlrev_b32 v{t3}, 4, v{t3}",
         f"v_lshl_add_u32 v{V_DQ}, v{t0}, 13, v{t3}"]
    for p in range(2):
        o += [f"v_and_b32 v{t3}, 1, v{t0}", f"v_or_b32 v{t3}, {2*p}, v{t3}", f"v_lshlrev_b32 v{t3}, 1, v{t3}", f"v_xor_b32 v{t3}, v{t3}, v1",
              f"v_and_b32 v{t3}, 7, v{t3}", f"v_lshlrev_b32 v{t3}, 4, v{t3}", f"v_lshrrev_b32 v{V_DG+p}, 3, v1",
              f"v_mul_u32_u24 v{V_DG+p}, 3456, v{V_DG+p}", f"v_add_u32 v{V_DG+p}, v{V_DG+p}, v{t3}"]
        if p: o.append(f"v_add_u32 v{V_DG+p}, {8*3456 - 1024}, v{V_DG+p}")
    return o
def setup_rest():
    t0, t1, t2, t3, t4 = range(V_T, V_T+5)
    o = [f"v_lshrrev_b32 v{t0}, 4, v1", f"v_bfe_u32 v{t1}, v1, 2, 2", f"v_and_b32 v{t2}, 3, v1"]
    o += [f"v_lshl_add_u32 v{t3}, v{t0}, 3, v{t1}", f"v_lshlrev_b32 v{t3}, 8, v{t3}", f"v_lshl_add_u32 v{t3}, v{t2}, 4, v{t3}"]
    for s in range(4): o += [f"v_xor_b32 v{V_QA+s}, {s}, v{t1}", f"v_lshl_add_u32 v{V_QA+s}, v{V_QA+s}, 6, v{t3}"]
    o += [f"v_and_b32 v{t4}, 1, v{t0}", f"v_lshl_add_u32 v{t3}, v{t4}, 3, v{t1}", f"v_lshlrev_b32 v{t3}, 7, v{t3}", f"v_lshl_add_u32 v{t3}, v{t2}, 3, v{t3}",
          f"v_lshrrev_b32 v{t0}, 1, v{t0}", f"v_lshl_add_u32 v{t3}, v{t0}, 12, v{t3}", f"v_add_u32 v{t3}, 65536, v{t3}",
          f"v_lshrrev_b32 v{t1}, 1, v{t1}", f"v_lshl_add_u32 v{t4}, v{t4}, 1, v{t1}"]
    for nt in range(4): o += [f"v_xor_b32 v{V_GA+nt}, {nt}, v{t4}", f"v_lshl_add_u32 v{V_GA+nt}, v{V_GA+nt}, 5, v{t3}"]
    o += [f"v_and_b32 v{t0}, 15, v1", f"v_lshrrev_b32 v{t1}, 4, v1", f"v_xor_b32 v{t2}, v{t0}, v{t1}"]
    for s in range(4):
        o += [f"v_xor_b32 v{t3}, {4*s}, v{t2}", f"v_lshlrev_b32 v{t3}, 4, v{t3}",
              f"v_lshl_add_u32 v{V_KA+s}, v{t0}, 8, v{t3}", f"v_lshl_add_u32 v{V_DK+s}, v{t1}, 8, v{t3}"]
    o += [f"v_lshrrev_b32 v{t3}, 2, v1", f"v_and_b32 v{t4}, 3, v1", f"v_lshlrev_b32 v{t4}, 3, v{t4}",
          f"v_lshl_add_u32 v{t4}, v{t3}, 8, v{t4}", f"v_add_u32 v{t4}, 65536, v{t4}", f"v_and_b32 v{t3}, 7, v{t3}"]
    for dt in range(8): o += [f"v_xor_b32 v{V_VA+dt}, {dt}, v{t3}", f"v_lshl_add_u32 v{V_VA+dt}, v{V_VA+dt}, 5, v{t4}"]
    for p in range(2):
        o += [f"v_add_u32 v{t3}, {4*p}, v{t1}", f"v_lshlrev_b32 v{t3}, 1, v{t3}", f"v_xor_b32 v{t3}, v{t3}, v{t0}", f"v_lshlrev_b32 v{t3}, 4, v{t3}",
              f"v_lshl_add_u32 v{V_DV+p}, v{t1}, 8, v{t3}", f"v_mul_u32_u24 v{t4}, 1280, v{t1}", f"v_add_u32 v{V_DP+p}, v{t4}, v{t3}"]
    o += [f"v_and_b32 v{t3}, 3, v1", f"v_cmp_eq_u32 vcc, 0, v{t3}", f"v_mov_b32 v{t4}, 0x3f803f80"]
    for i in range(4): o.append(f"v_cndmask_b32 v{V_ONES+i}, 0, v{t4}, vcc")
    o += [f"v_add_u32 v{V_L16B}, 4096, v{V_L16}", f"v_mov_b32 v{V_AA}, v{V_L16}", f"v_add_u32 v{V_AA+1}, 61440, v{V_L16}", f"v_add_u32 v{V_AA+2}, 122880, v{V_L16}",
          f"s_bfe_u32 s3, s{S_HEAD}, 0x10002", "s_lshl_b32 s3, s3, 1", f"s_lshr_b32 s{S_T2}, s{S_WAVE}, 1", f"s_add_u32 s3, s3, s{S_T2}", "s_lshl_b32 s3, s3, 5",
          f"v_and_b32 v{t0}, 7, v1", f"v_lshl_add_u32 v{V_FL}, v{t0}, 2, s3", f"s_and_b32 s3, s{S_FOW}, 28", f"v_lshl_add_u32 v{t0}, v{t0}, 5, s3",
          f"v_lshrrev_b32 v{t1}, 2, v1", f"v_cmp_eq_u32 vcc, 2, v{t1}", f"v_cndmask_b32 v{V_FL}, v{V_FL}, v{t0}, vcc"]
    return o

def ln_loads():
    o = [f"v_lshrrev_b32 v10, 4, v0", "v_and_b32 v11, 15, v0", "v_mul_u32_u24 v12, 1280, v10", "v_lshl_add_u32 v12, v11, 4, v12",
         f"s_lshl_b32 s3, s{S_QB}, 5", f"s_add_u32 s3, s3, s{S_HEAD}", f"s_mul_i32 s{S_T2}, s3, 10240"]
    o += [X(f"buffer_load_dwordx4 {vr(128+4*i)}, v12, {sr(S_T)}, s{S_T2} offen offset:{256*i}", label=f"x{i}") for i in range(5)]
    return o
def ln_compute():
    D = 160; a, b, c_, d = 14, 15, 16, 17
    o = ["v_lshlrev_b32 v13, 8, v11", "v_lshl_add_u32 v13, v10, 4, v13", f"v_mov_b32 v{a}, 0", f"v_mov_b32 v{b}, 0",
         f"s_lshl_b32 s3, s{S_QB}, 5", f"s_add_u32 s3, s3, s{S_HEAD}", f"s_lshr_b32 s{S_T2}, s3, 1", f"s_mul_i32 s{S_T2}, s{S_T2}, 20480",
         "s_and_b32 s3, s3, 1", "s_lshl_b32 s3, s3, 7", f"s_add_u32 s{S_T2}, s{S_T2}, s3"]
    for i in range(5):
        o.append(f"s_waitcnt vmcnt(@x{i})")
        for r in range(4):
            x = 128+4*i+r; e = D + 8*i + 2*r
            o += [f"v_lshlrev_b32 v{e}, 16, v{x}", f"v_and_b32 v{e+1}, 0xffff0000, v{x}", f"v_add_f32 v{a}, v{a}, v{e}", f"v_add_f32 v{b}, v{b}, v{e+1}"]
    rowsum = lambda x: [f"v_add_f32 v{x}, v{x}, v{x} {m} row_mask:0xf bank_mask:0xf" for m in ("quad_perm:[1,0,3,2]", "quad_perm:[2,3,0,1]", "row_half_mirror", "row_mirror")]
    o += [f"v_add_f32 v{a}, v{a}, v{b}"] + rowsum(a) + [f"v_mul_f32 v{a}, {fbits(1/640)}, v{a}", f"v_mov_b32 v{c_}, 0", f"v_mov_b32 v{d}, 0"]
    for e in range(40): o += [f"v_sub_f32 v{D+e}, v{D+e}, v{a}", f"v_fmac_f32 v{c_+(e&1)}, v{D+e}, v{D+e}"]
    o += [f"v_add_f32 v{c_}, v{c_}, v{d}"] + rowsum(c_)
    o += [f"v_mov_b32 v{d}, {fbits(1e-5)}", f"v_fmac_f32 v{d}, {fbits(1/640)}, v{c_}", f"v_rsq_f32 v{d}, v{d}", f"v_mul_f32 v{d}, {fbits(QSCALE)}, v{d}"]
    for i in range(5):
        for r in range(4):
            e = D + 8*i + 2*r
            o += [f"v_mul_f32 v{e}, v{e}, v{d}", f"v_mul_f32 v{e+1}, v{e+1}, v{d}", f"v_cvt_pk_bf16_f32 v{128+4*i+r}, v{e}, v{e+1}"]
        o.append(X(f"buffer_store_dwordx4 {vr(128+4*i)}, v13, {sr(S_WS)}, s{S_T2} offen sc1", label="xn"))
        if i < 4: o.append(f"s_add_u32 s{S_T2}, s{S_T2}, 4096")
    return o

def spin(name, load, cmp, first_loaded=False):
    o = [f"s_mov_b32 s{S_T2}, {SPIN}"]
    if first_loaded: o += [cmp, "s_nop 1", f"s_cbranch_vccz {name}_ok"]
    o += [f"{name}:", X(load, label="poll"), f"s_sub_u32 s{S_T2}, s{S_T2}, 1", "s_waitcnt vmcnt(0)", cmp, f"s_cmp_eq_u32 s{S_T2}, 0", f"s_cbranch_scc1 {name}_ok",
          f"s_cbranch_vccnz {name}", f"{name}_ok:"]
    return o

def accQ(qt, s, T): return vr(128 + ((qt*4+s)*2+T)*4)
def accG(u, nt, qt): return ar(64*u + (nt*4+qt)*4)
def rX(par, qt, ks): return ar(128 + (par*8+qt*2+ks)*4)
def rW(st, ks): return ar(192 + (st*2+ks)*4)
TILES = [("G", u, nt) for nt in range(4) for u in range(2)] + [("Q", s, T) for s in range(4) for T in range(2)]
def rd_w(t, ti, ks, h):
    kind, a, b = TILES[ti]; d = ar(192 + ((ti & 3)*2+ks)*4 + 2*h, 2)
    if kind == "Q":
        sl = kslot(t + 2)
        return X(f"ds_read_b64_tr_b16 {d}, v{V_QA+a} offset:{sl + (32*ks+4*h)*256 + 8*b}", lds=(sl, sl + 16384))
    sl = vslot(t + 2)
    return X(f"ds_read_b64_tr_b16 {d}, v{V_GA+b} offset:{sl + ks*8192 + h*512 + a*2048}", lds=(65536 + sl, 65536 + sl + 16384))
def ld_x(t, n):
    qt, ks = n >> 1, n & 1
    pre = [f"s_add_u32 s{S_XOFF}, s{S_XOFF}, {20480 if qt else 2048 - 3*20480 & 0xffffffff}"] if ks == 0 and (t or qt) else []
    return pre, X(f"buffer_load_dwordx4 {rX(t&1, qt, ks)}, v{V_L16}, {sr(S_WS)}, s{S_XOFF} offen offset:{ks*1024} sc1", label=f"X{t}")
def dma_w(t, n):
    if n < 4:
        sl = kslot(t + 2)
        pre = [f"s_add_u32 m0, s{S_LDSW}, {sl}"] if n == 0 else []
        if t or n: pre.append(f"s_add_u32 s{S_QOFF}, s{S_QOFF}, {31744 if n else 64*8192 - 3*31744}")
        return pre, X(f"buffer_load_dwordx4 v{V_DQ}, {sr(S_WQ)}, s{S_QOFF} offen offset:{n*1024} lds", label=f"W{t}", lds=(sl, sl + 16384))
    u, p = (n - 4) >> 1, n & 1; sl = 65536 + vslot(t + 2)
    pre = [f"s_add_u32 m0, s{S_LDSW}, {sl + u*2048}"] if p == 0 else []
    if n == 4 and t: pre.append(f"s_add_u32 s{S_GOFF}, s{S_GOFF}, {64*3456}")
    return pre, X(f"buffer_load_dwordx4 v{V_DG+p}, {sr(S_WU if u else S_WG)}, s{S_GOFF} offen offset:{p*1024} lds", label=f"W{t}", lds=(sl, sl + 16384))
def dma_pack(p):
    pre = []
    if p % 4 == 0: pre.append(f"s_add_u32 m0, s{S_T3}, {PACK + p*1024}")
    if p: pre.append(f"s_add_u32 s{S_PSRC}, s{S_PSRC}, {5120 + 3072 if p == 4 else 4096}")
    return pre, X(f"buffer_load_dwordx4 v{V_DP+(p&1)}, {sr(S_T)}, s{S_PSRC} offen offset:{(p&3)*1024} lds", label="pk", lds=(PACK, PACK + 32768), priv=True)
def proj_slots(c, npre):
    LEAD = 2; slots = []
    for t in range(NP):
        for ti in range(16):
            kind, a, b = TILES[ti]
            for m in range(8):
                qt = m >> 1; ks = (m & 1) ^ (qt & 1)
                d = accQ(qt, a, b) if kind == "Q" else accG(a, b, qt)
                slots.append(Slot(f"{MF} {d}, {rW(ti&3, ks)}, {rX(t&1, qt, ks)}, {0 if (t == 0 and m & 1 == 0) else d}", -20 + t))
    for t in range(NP):
        b = t*128; mem = []
        if 1 <= t < NP - 1: mem += [ld_x(t+1, n) for n in range(8)]
        if npre <= t + 2 < NP: mem += [dma_w(t+2, n) for n in range(8)]
        if t == 0: mem += [dma_pack(p) for p in range(8)]
        if t == 8: mem += [dma_kv(c, "K", 0, p) for p in range(4)] + [dma_kv(c, "V", 0, p) for p in range(4)]
        if t == 9: mem += [dma_kv(c, "K", 1, p) for p in range(4)]
        for i, op in enumerate(mem): put_vmem(slots, b + 5 + 6*i, op)
        for ti in range(16):
            nti, nt_ = (ti + LEAD, t) if ti + LEAD < 16 else (ti + LEAD - 16, t + 1)
            if nt_ < NP:
                for x in range(4): slots[b + ti*8 + 2*x].mem.append(rd_w(nt_, nti, x >> 1, x & 1))
            slots[b + ti*8 + 7].pre.append("s_waitcnt lgkmcnt(?)")
        nxt = f"W{t+1}" if t + 1 < NP else "K0"
        slots[b + (16 - LEAD)*8 - 1].pre += [f"s_waitcnt vmcnt(@{nxt})", "s_barrier"]
        if t + 1 < NP: slots[b + 125].pre.append(f"s_waitcnt vmcnt(@X{t+1})")
    b = 2*128
    slots[b].pre.append("s_waitcnt vmcnt(@pk)")
    for dt in range(8):
        g = b + 1 + 12*dt
        slots[g].valu.append(f"v_add_u32 v{V_T+(dt&1)}, s{S_T3+1}, v{V_VA+dt}")
        for h in range(2):
            slots[g + 2 + 6*h].mem.append(X(f"ds_read_b64_tr_b16 {vr(V_S+4*dt+2*h, 2)}, v{V_T+(dt&1)} offset:{h*4096}", lds=(PACK, PACK + 32768), priv=True))
    for dt in range(8):
        g = (2 + dt // 4)*128 + 101 + 6*(dt % 4)
        put_vmem(slots, g, ([], X(f"buffer_store_dwordx4 {vr(V_S+4*dt)}, v{V_L16B if dt >= 4 else V_L16}, {sr(S_WP)}, s{S_PDST} offen offset:{(dt&3)*1024} sc1", label="pst")))
    return slots
def proj_epilogue():
    o = []; n = 0
    for qt in range(4):
        for u in range(2):
            t = V_S + (n % 2)*16; p = V_NEGM + (n % 4)*4; n += 1
            for h in range(2):
                for r in range(4):
                    o += [f"v_accvgpr_read_b32 v{t+4*h+r}, a{((2*u+h)*4+qt)*4+r}", f"v_accvgpr_read_b32 v{t+8+4*h+r}, a{64+((2*u+h)*4+qt)*4+r}"]
            for x in range(8): o.append(f"v_mul_f32 v{t+x}, v{t+x}, v{t+8+x}")
            for x in range(4): o.append(f"v_cvt_pk_bf16_f32 v{p+x}, v{t+2*x}, v{t+2*x+1}")
            o.append(X(f"buffer_store_dwordx4 {vr(p)}, v{V_L16B if qt >= 2 else V_L16}, {sr(S_HS)}, s{S_HOFF} offen offset:{(qt&1)*2048 + u*1024} sc1", label="hst"))
    for i in range(63, -1, -1): o.append(f"v_cvt_pk_bf16_f32 v{192+i}, v{128+2*i}, v{129+2*i}")
    return o

def first_max():
    o = ["s_waitcnt lgkmcnt(0)"]
    for qt in range(4):
        d = vr(bS(1, qt))
        for s in range(4): o.append(f"{MF} {d}, {rK(0, s)}, {rQ(qt, s)}, {0 if s == 0 else d}")
    ch = []
    for qt in range(4):
        b = bS(1, qt); m = V_NEGM + 4*qt
        ch.append([f"v_max3_f32 v{b}, v{b}, v{b+1}, v{b+2}", f"v_max_f32 v{b}, v{b}, v{b+3}"] + allreduce_g("v_max_f32", b, b + 1) +
                  [f"v_sub_f32 v{m+r}, 0, v{b}" for r in range(4)])
    return o + interleave(ch)

def attn_slots(c, inject):
    ones = [(qt, ks) for qt in c.mq for ks in range(2)]
    slots = []; base = {}
    for j in range(-1, NT):
        for i in range(4):
            base[(j, i)] = len(slots); ms = []
            mine = [o for n, o in enumerate(ones) if n*4 // len(ones) == i]
            onem = lambda qt, ks: f"{MF} {vr(V_L+4*qt)}, {vr(V_ONES)}, {vr(bP(j&1, qt, ks))}, {0 if (j == 0 and ks == 0) else vr(V_L+4*qt)}"
            for qt in range(4):
                for s_ in range(4):
                    s = 3 - s_ if qt & 1 else s_; d = vr(bS(i & 1, qt))
                    ms.append(f"{MF} {d}, {rK(i&1, s)}, {rQ(qt, s)}, {vr(V_NEGM + 4*qt) if s_ == 0 else d}" if j + 1 < NT else None)
            if j == NT - 1 and i == 0: ms[16 - len(ones):16] = [onem(*o) for o in ones]
            for dl in range(2):
                for qt in range(4):
                    for ks_ in range(2):
                        ks = 1 - ks_ if qt & 1 else ks_; d = rO(2*i + dl, qt)
                        ms.append(f"{MF} {d}, {rV(i&1, dl*2+ks)}, {vr(bP(j&1, qt, ks))}, {0 if (j == 0 and ks_ == 0) else d}" if j >= 0 else None)
            ms += [onem(*o) if 0 <= j < NT - 1 else None for o in mine]
            slots += [Slot(m, j) for m in ms]
    ready = {}
    for j in range(-1, NT):
        for i in range(4):
            b = base[(j, i)]
            if j + 1 < NT:
                for e in range(16):
                    qt, r = e >> 2, e & 3; g = b + c.G0 + 2*e; sv = bS(i & 1, qt) + r
                    slots[g].valu.append(f"v_exp_f32 v{sv}, v{sv}"); slots[g].E = True
                    q = ready.setdefault(g + 1, [])
                    if r & 1: q.append(("C", f"v_cvt_pk_bf16_f32 v{bP((j+1) & 1, qt, i >> 1) + 2*(i & 1) + (r >> 1)}, v{sv-1}, v{sv}"))
                    if qt not in c.mq: q.append(("A", f"v_add_f32 v{V_LS+qt}, v{V_LS+qt}, v{sv}"))
            tj, ti = (j + 1, i + 1) if i < 3 else (j + 2, 0)
            if tj < NT:
                for s in range(4): slots[b + c.rpos[s]].mem.append(rd_k(tj, ti, s))
            vj, vi = (j, i + 1) if i < 3 else (j + 1, 0)
            if 0 <= vj < NT:
                for x in range(4): slots[b + c.t0pos[x]].mem.append(rd_v(vj, 2*vi, x >> 1, x & 1))
            if j >= 0:
                for x in range(4): slots[b + c.t1pos[x]].mem.append(rd_v(j, 2*i + 1, x >> 1, x & 1))
            for w in c.wpos: slots[b + w].pre.append("s_waitcnt lgkmcnt(?)")
            tile = j + 3 if i < 2 else j + 2
            if tile < NT:
                for x in range(2): put_vmem(slots, b + c.dma[x], dma_kv(c, "K" if i < 2 else "V", tile, (i & 1)*2 + x))
            if i == 3 and j + 1 < NT:
                slots[b + c.bar].pre += [f"s_waitcnt vmcnt(@K{j+2}|V{j+1})", "s_barrier"]
    inject(slots, base)
    qC, qA = [], []
    for g, s in enumerate(slots):
        for k, t in ready.get(g, []): (qC if k == "C" else qA).append(t)
        cap = 0 if s.E else c.dmacap if s.G else 2 - len(s.mem)
        if not s.E and len(qC) + len(qA) > 6: cap = max(cap, 1) + 1
        head = []
        while cap > 0 and (qC or qA): head.append((qC or qA).pop(0)); cap -= 1
        s.valu = head + s.valu
    assert not qC and not qA
    return slots, base

def l_finish(c):
    ch = []
    for qt in range(4):
        if qt in c.mq: ch.append([f"v_mov_b32 v{V_LS+qt}, v{V_L+4*qt}"])
        else: ch.append(allreduce_g("v_add_f32", V_LS+qt, V_T+qt))
    ch.sort(key=len, reverse=True)
    o = interleave([x for x in ch if len(x) > 1]) if any(len(x) > 1 for x in ch) else []
    o += [x[0] for x in ch if len(x) == 1]
    return o + [f"v_rcp_f32 v{V_T+4+qt}, v{V_LS+qt}" for qt in range(4)]
def o_epilogue(u):
    o = []
    for qt in range(4):
        t = V_S + qt*8; p = V_P + ((u & 1)*4 + qt)*4
        for h in range(2):
            for r in range(4): o.append(f"v_accvgpr_read_b32 v{t+4*h+r}, a{((2*u+h)*4+qt)*4+r}")
        for x in range(8): o.append(f"v_mul_f32 v{t+x}, v{t+x}, v{V_T+4+qt}")
        for x in range(4): o.append(f"v_cvt_pk_bf16_f32 v{p+x}, v{t+2*x}, v{t+2*x+1}")
        if u == 2 and qt == 0: o.append(f"s_add_u32 s{S_OOFF}, s{S_OOFF}, 262144")
        o.append(X(f"buffer_store_dwordx4 {vr(p)}, v{V_L16B if qt >= 2 else V_L16}, {sr(S_WS)}, s{S_OOFF} offen offset:{(qt&1)*2048 + (u&1)*1024} sc1", label="ost"))
    for qt in range(4):
        m = f"{MF} {vr(V_CHK)}, {vr(V_ONES)}, {vr(V_P + ((u & 1)*4 + qt)*4)}, {0 if u == 0 and qt == 0 else vr(V_CHK)}"
        o.insert(len(o) if qt == 3 else 21*(qt + 1) + qt + 3, m)
    return o
def status():
    t = V_T
    return [f"v_add_f32 v{t}, v{V_LS}, v{V_LS+1}", f"v_add_f32 v{t+1}, v{V_LS+2}, v{V_LS+3}", f"v_add_f32 v{t}, v{t}, v{V_CHK+1}", f"v_add_f32 v{t}, v{t}, v{t+1}",
            f"v_cmp_ngt_f32 vcc, {fbits(2.0**40)}, v{t}", f"s_and_b32 s{S_BAD}, vcc_lo, s{S_MODE}", f"s_cselect_b32 s{S_BAD}, 2, 1"]
def slow_path(c):
    M = V_T
    koff = [f"s_lshl_b32 s{S_KOFF}, s{S_HEAD}, 19", f"s_add_u32 s{S_KOFF}, s{S_KOFF}, s{S_LDSW}"]
    o = ["L_slow:", "s_waitcnt vmcnt(0) lgkmcnt(0)", "s_barrier"] + koff + [f"s_mov_b32 s{S_CNT}, {NT}"]
    o += [f"v_mov_b32 v{M+qt}, 0xff800000" for qt in range(4)]
    o += ["L_mx:"] + flat(dma_kv(c, "K", 0, p) for p in range(4)) + ["s_waitcnt vmcnt(0)", "s_barrier", f"s_add_u32 s{S_KOFF}, s{S_KOFF}, 16384"]
    for kt in range(4):
        o += [rd_k(0, kt, s) for s in range(4)] + ["s_waitcnt lgkmcnt(0)"]
        for qt in range(4):
            d = vr(bS(0, qt))
            o += [f"{MF} {d}, {rK(kt&1, s)}, {rQ(qt, s)}, {0 if s == 0 else d}" for s in range(4)]
        for qt in range(4):
            b = bS(0, qt)
            o += [f"v_max3_f32 v{M+qt}, v{M+qt}, v{b}, v{b+1}", f"v_max3_f32 v{M+qt}, v{M+qt}, v{b+2}, v{b+3}"]
    o += ["s_barrier", f"s_sub_u32 s{S_CNT}, s{S_CNT}, 1", f"s_cmp_lg_u32 s{S_CNT}, 0", "s_cbranch_scc1 L_mx"]
    o += koff + [f"s_mov_b32 s{S_VOFF}, s{S_KOFF}"]
    o += flat(dma_kv(c, w, t, p) for w, t in (("K", 0), ("V", 0), ("K", 1)) for p in range(4))
    for qt in range(4): o += allreduce_g("v_max_f32", M+qt, M+4)
    o += [f"s_cmp_eq_u32 s{S_BAD}, 1", "s_cbranch_scc1 L_keep"]
    o += [f"v_sub_f32 v{V_NEGM+4*qt+r}, 0, v{M+qt}" for qt in range(4) for r in range(4)]
    o += ["L_keep:"] + [f"v_mov_b32 v{V_LS+i}, 0" for i in range(4)] + [f"v_mov_b32 v{V_K1}, 0", f"s_mov_b32 s{S_MODE}, 0", f"s_sub_u32 s{S_OOFF}, s{S_OOFF}, 262144"]
    o += tail_setup() + ["s_waitcnt vmcnt(0)", "s_barrier"] + [rd_k(0, 0, s) for s in range(4)] + ["s_waitcnt lgkmcnt(0)", "s_branch L_attn"]
    return o

SL = [7, 0, 1, 6, 2, 5, 4, 3]
NB = 4
def accT(i, nt, mt): return ar((nt*2+mt)*4) if i < NF else vr(176 + (nt*2+mt)*4)
def rA(n, ks): return ar(192 + ((n % 8)*2+ks)*4)
def rB(i, mt, ks): return ar(128 + (i % NB)*16 + (mt*2+ks)*4)
def dma_a(i, p):
    lo = SL[i % 8]*20480; pre = []
    if p in (0, 4): pre.append(f"s_add_u32 m0, s{S_ALDS}, {lo + p*1024}")
    if p == 4: pre.append(f"s_add_u32 s{S_AOFF}, s{S_AOFF}, 4096")
    if p == 0 and i == NF: pre.append(f"s_mov_b32 s{S_AOFF}, s{S_T3}")
    elif p == 0 and i: pre.append(f"s_add_u32 s{S_AOFF}, s{S_AOFF}, {81920 - 4096}")
    return pre, X(f"buffer_load_dwordx4 v{V_L16}, {sr(S_WP)}, s{S_AOFF} offen offset:{(p&3)*1024} sc1 lds", label=f"A{i}", lds=(lo, lo + 20480))
def ld_b(i, n):
    pre = []
    if n == 0 and i == NF: pre.append(f"s_mov_b32 s{S_BOFF}, s{S_T3+1}")
    elif n == 0 and i: pre.append(f"s_add_u32 s{S_BOFF}, s{S_BOFF}, 262144")
    return pre, X(f"buffer_load_dwordx4 {rB(i, n >> 1, n & 1)}, v{V_L16}, {sr(S_HS if i < NF else S_WS)}, s{S_BOFF} offen offset:{n*1024} sc1", label=f"B{i}")
def rd_a(i, nt, ks):
    sl = SL[i % 8]; lo = sl*20480
    return X(f"ds_read_b128 {rA(i*10+nt, ks)}, v{V_AA + sl // 3} offset:{(sl % 3)*20480 + ks*10240 + nt*1024}", lds=(lo, lo + 20480))
def tail_setup():
    kq, mh, nb, t = S_T, S_T+1, S_T+2, S_T+3
    return [f"s_lshr_b32 s{kq}, s{S_HEAD}, 3", f"s_bfe_u32 s{mh}, s{S_HEAD}, 0x10002", f"s_and_b32 s{nb}, s{S_HEAD}, 3",
            f"s_mul_i32 s{S_ALDS}, s{S_WAVE}, 5120",
            f"s_lshr_b32 s{t}, s{S_WAVE}, 1", f"s_mul_i32 s{S_AOFF}, s{t}, 40960", f"s_and_b32 s{t}, s{S_WAVE}, 1", f"s_mul_i32 s{t}, s{t}, 5120",
            f"s_add_u32 s{S_AOFF}, s{S_AOFF}, s{t}", f"s_mul_i32 s{t}, s{nb}, 10240", f"s_add_u32 s{S_AOFF}, s{S_AOFF}, s{t}",
            f"s_mul_i32 s{t}, s{kq}, {32*40960}", f"s_add_u32 s{S_T3}, s{S_AOFF}, s{t}", f"s_add_u32 s{S_T3}, s{S_T3}, {54*40960}",
            f"s_mul_i32 s{t}, s{kq}, {14*40960}", f"s_add_u32 s{S_AOFF}, s{S_AOFF}, s{t}",
            f"s_lshl_b32 s{S_BOFF}, s{S_QB}, 1", f"s_add_u32 s{S_BOFF}, s{S_BOFF}, s{mh}", f"s_lshl_b32 s{S_ROFF}, s{S_BOFF}, 2",
            f"s_add_u32 s{S_BOFF}, s{S_ROFF}, s{S_WAVE}", f"s_lshl_b32 s{S_BOFF}, s{S_BOFF}, 12",
            f"s_lshl_b32 s{t}, s{kq}, 22", f"s_add_u32 s{S_T3+1}, s{S_BOFF}, s{t}", f"s_add_u32 s{S_T3+1}, s{S_T3+1}, {WS_O}",
            f"s_mul_i32 s{t}, s{kq}, {7*262144}", f"s_add_u32 s{S_BOFF}, s{S_BOFF}, s{t}",
            f"s_add_u32 s{S_ROFF}, s{S_ROFF}, s{kq}", f"s_lshl_b32 s{S_ROFF}, s{S_ROFF}, 1", f"s_lshr_b32 s{t}, s{S_WAVE}, 1", f"s_add_u32 s{S_ROFF}, s{S_ROFF}, s{t}",
            f"s_mul_i32 s{S_ROFF}, s{S_ROFF}, {16*1280}", f"s_lshl_b32 s{t}, s{nb}, 1", f"s_and_b32 s3, s{S_WAVE}, 1", f"s_add_u32 s{t}, s{t}, s3",
            f"s_mul_i32 s{t}, s{t}, 160", f"s_add_u32 s{S_ROFF}, s{S_ROFF}, s{t}",
            f"s_lshl_b32 s{t}, s{S_QB}, 3", f"s_and_b32 s3, s{S_HEAD}, 7", f"s_add_u32 s{t}, s{t}, s3",
            f"s_lshl_b32 s{t}, s{t}, 2",
            f"s_add_u32 s3, s{t}, s{S_WAVE}", "s_lshl_b32 s3, s3, 2", f"s_add_u32 s3, s3, s{kq}", f"s_mul_i32 s{S_POFF}, s3, 20480", f"s_add_u32 s{S_POFF}, s{S_POFF}, {WS_P}",
            f"s_add_u32 s3, s{t}, s{kq}", f"s_mul_i32 s{S_PIN}, s3, 81920", f"s_add_u32 s{S_PIN}, s{S_PIN}, {WS_P}",
            f"s_andn2_b32 s{S_FO}, s{S_FOW}, 255", f"s_andn2_b32 s{S_FP}, s{S_FPW}, 255", f"s_lshl_b32 s{t}, s{kq}, 4", f"s_add_u32 s{S_FP}, s{S_FP}, s{t}"]
def flag_store(soff, val):
    return [f"v_mov_b32 v{V_K1}, {val}"], X(f"buffer_store_dword v{V_K1}, v{V_ONEW}, {sr(S_WS)}, s{soff} offen sc1", label="flag")
def part_blocks():
    bl = []
    for nh in range(2):
        for b in range(2):
            for mt in range(2): bl.append(((mt*2+nh)*2+b, [(5*nh+2*b, mt), (5*nh+2*b+1, mt)]))
    for mt in range(2): bl.append((8+mt, [(4, mt), (9, mt)]))
    return bl
def part_store(kind, blk, reg):
    o = kind*10240 + blk*1024
    return [f"s_add_u32 s3, s{S_POFF}, {o}"], X(f"buffer_store_dwordx4 {vr(reg)}, v{V_L16}, {sr(S_WS)}, s3 offen sc1", label=f"p{kind}")
def part_loads(kind, dst):
    o = []
    for src in range(4):
        d = dst + 10*src
        o.append(([f"s_add_u32 s3, s{S_PIN}, {src*20480 + kind*10240}"], X(f"buffer_load_dwordx4 {vr(d)}, v{V_T+8}, {sr(S_WS)}, s3 offen sc1", label=f"q{kind}")))
        o.append(([], X(f"buffer_load_dwordx4 {vr(d+4)}, v{V_T+8}, {sr(S_WS)}, s3 offen offset:1024 sc1", label=f"q{kind}")))
        o.append(([], X(f"buffer_load_dwordx2 {vr(d+8, 2)}, v{V_T+9}, {sr(S_WS)}, s3 offen sc1", label=f"q{kind}")))
    return o
def part_sum(src, dst, tmp):
    o = []
    for r in range(10):
        o += [f"v_lshlrev_b32 v{dst+2*r}, 16, v{src+r}", f"v_and_b32 v{dst+2*r+1}, 0xffff0000, v{src+r}"]
        for s in range(1, 4):
            x = src + 10*s + r
            o += [f"v_lshlrev_b32 v{tmp}, 16, v{x}", f"v_and_b32 v{x}, 0xffff0000, v{x}", f"v_add_f32 v{dst+2*r}, v{dst+2*r}, v{tmp}", f"v_add_f32 v{dst+2*r+1}, v{dst+2*r+1}, v{x}"]
    return o
V_PI = 128; V_G = 8; V_XR = 28; V_XF = 48
def tail_slots(c):
    N = NF + NS; LG = 4; slots = []
    for i in range(N):
        for nt in range(10):
            for m in range(4):
                mt = m >> 1; ks = (m & 1) ^ mt; d = accT(i, nt, mt)
                slots.append(Slot(f"{MF} {d}, {rA(i*10+nt, ks)}, {rB(i, mt, ks)}, {0 if (i in (0, NF) and m & 1 == 0) else d}", 100 + i))
    BG = 40 - 4*LG - 1
    vq = {i: [] for i in range(N)}
    for i in range(N):
        b = i*40
        for nt in range(10):
            n = i*10 + nt + LG
            if n < N*10:
                for ks in range(2): slots[b + nt*4 + 2*ks].mem.append(rd_a(n // 10, n % 10, ks))
            if nt & 1: slots[b + nt*4 + 3].pre.append("s_waitcnt lgkmcnt(?)")
        if i + 1 < N: slots[b + 37].pre.append(f"s_waitcnt vmcnt(@B{i+1})")
        k = i + NB - 1
        if i >= 1 and k < N and not (k >= NF and i < NF - 1): vq[i] += [ld_b(k, n) for n in range(4)]
        if i & 1 and i + 1 < N:
            want = "|".join(f"A{k}" for k in (i+1, i+2))
            slots[b + BG].pre += [f"s_waitcnt vmcnt(@{want})", "s_barrier"]
            for k, st in ((i + 1, i + 6), (i + 2, i + 7)):
                if 8 <= st < N: vq[k] += [dma_a(st, p) for p in range(5)]
    vq[NF - 1] = [ld_b(k, n) for k in range(NF, NF + NB - 2) for n in range(4)] + vq[NF - 1]
    for k, x in enumerate(status()): slots[8 + min(k, 5)].valu.append(x)
    slots[c.osig - 1].pre.append("s_waitcnt vmcnt(@ost)")
    put_vmem(slots, c.osig, flag_store(S_FOW, f"s{S_BAD}"), back=(2,))
    ld = f"buffer_load_dword v{V_CA}, v{V_FL}, {sr(S_WS)}, s{S_FO} offen sc1"
    put_vmem(slots, c.opoll, ([], X(ld, label="fo")))
    slots[(NF - 1)*40 - 1].valu += stamp(5, c.T) + ["s_waitcnt vmcnt(@fo)", f"v_cmp_ne_u32 vcc, 1, v{V_CA}", "s_nop 1", "s_cbranch_vccnz L_ow", "L_ow_ok:"] + stamp(6, c.T)
    side = ["L_ow:", f"s_mov_b32 s{S_T2}, {SPIN}", "L_ow2:", ld, f"s_sub_u32 s{S_T2}, s{S_T2}, 1", "s_waitcnt vmcnt(0)", f"v_cmp_eq_u32 vcc, 2, v{V_CA}",
            "s_and_b32 s3, vcc_lo, 0xf00", f"s_and_b32 s3, s3, s{S_MODE}", "s_cbranch_scc1 L_slow", f"v_cmp_ne_u32 vcc, 1, v{V_CA}",
            f"s_cmp_eq_u32 s{S_T2}, 0", "s_cbranch_scc1 L_ow_ok", "s_cbranch_vccnz L_ow2", "s_branch L_ow_ok"]
    va = {i: [] for i in range(N)}
    for n, (blk, tl) in enumerate(part_blocks()):
        st = NF + n // 5; r = V_S + (n % 4)*4; t = V_S + 16
        for k, (nt, mt) in enumerate(tl):
            a = (nt*2+mt)*4
            va[st] += [f"v_accvgpr_read_b32 v{t+4*k+e}, a{a+e}" for e in range(4)]
        va[st] += [f"v_cvt_pk_bf16_f32 v{r+e}, v{t+2*e}, v{t+2*e+1}" for e in range(4)]
        va[st].append(part_store(1, blk, r))
    slots[(NF + 4)*40 + BG + 1].pre.append("s_waitcnt vmcnt(@p1)")
    put_vmem(slots, (NF + 4)*40 + BG + 2, flag_store(S_FPW, 1), back=(2,))
    gi = NF + 8
    va[gi - 1] += [f"v_and_b32 v{V_T+10}, 3, v1", f"v_lshlrev_b32 v{V_T+10}, 2, v{V_T+10}", f"s_lshl_b32 s3, s{S_WAVE}, 11", f"v_add_u32 v{V_T+8}, s3, v{V_L16}",
                   f"s_lshr_b32 s3, s{S_WAVE}, 1", "s_lshl_b32 s3, s3, 10", "s_add_u32 s3, s3, 8192", f"v_add_u32 v{V_T+9}, s3, v{V_L16}",
                   f"s_and_b32 s3, s{S_WAVE}, 1", "s_lshl_b32 s3, s3, 3", f"v_add_u32 v{V_T+9}, s3, v{V_T+9}",
                   "v_and_b32 v2, 15, v1", f"v_mul_u32_u24 v{V_XO}, 1280, v2", "v_lshrrev_b32 v2, 4, v1", f"v_lshl_add_u32 v{V_XO}, v2, 3, v{V_XO}"]
    ldp = f"buffer_load_dword v{V_CA}, v{V_T+10}, {sr(S_WS)}, s{S_FP} offen sc1"
    vq[gi] = [([], X(ldp, label="fp"))] + vq[gi]
    slots[(gi + 2)*40 - 1].valu += ["s_waitcnt vmcnt(@fp)", f"v_cmp_gt_u32 vcc, 1, v{V_CA}", "s_nop 1", "s_cbranch_vccnz L_gw", "L_gw_ok:"]
    vq[gi + 2] += part_loads(1, V_PI)[:6]; vq[gi + 3] += part_loads(1, V_PI)[6:]
    vq[gi + 4] += [([], X(f"buffer_load_dwordx2 {vr(V_XR+2*nt, 2)}, v{V_XO}, {sr(S_XSRD)}, s{S_ROFF} offen offset:{32*nt}", label="xr")) for nt in range(5)]
    ic = 1.0 / QSCALE**2
    g = ["s_waitcnt vmcnt(@q1)"] + part_sum(V_PI, V_G, V_T)
    g += [f"v_mul_f32 v{V_PI+e}, {fbits(-ic*math.log2(math.e))}, v{V_G+e}" for e in range(20)] + [f"v_exp_f32 v{V_PI+e}, v{V_PI+e}" for e in range(20)]
    for e in range(20): g += [f"v_add_f32 v{V_PI+e}, 1.0, v{V_PI+e}", f"v_mul_f32 v{V_G+e}, {fbits(ic)}, v{V_G+e}"]
    g += [f"v_rcp_f32 v{V_PI+e}, v{V_PI+e}" for e in range(20)] + [f"v_mul_f32 v{V_G+e}, v{V_G+e}, v{V_PI+e}" for e in range(20)]
    g += ["s_waitcnt vmcnt(@xr)"]
    for e in range(20): g.append(f"v_and_b32 v{V_XF+e}, 0xffff0000, v{V_XR+e//2}" if e & 1 else f"v_lshlrev_b32 v{V_XF+e}, 16, v{V_XR+e//2}")
    late = g
    for i in range(N):
        for k, op in enumerate(vq[i]):
            pos = 1 + 2*k if len(vq[i]) > 9 else 1 + 4*k
            put_vmem(slots, i*40 + pos, op, back=(1, 1) if len(vq[i]) > 9 else (3, 1))
    gpos = 0
    for i in range(N):
        q = list(va[i]); gpos = max(gpos, i*40 + (8 if i == NF else 0))
        while q:
            s = slots[gpos]; cap = 0 if s.G else 3 - len(s.mem)
            while q and cap > 0:
                x = q.pop(0)
                if isinstance(x, tuple): s.valu += flat([x]); cap = 0
                else: s.valu.append(x); cap -= 0 if x.startswith("s_") else 1
            gpos += 1
    b = (N - 1)*40; post = []
    for n, (blk, tl) in enumerate(part_blocks()):
        r = V_KA + (n % 3)*4
        ops = []
        for k, (nt, mt) in enumerate(tl):
            a = 176 + (nt*2+mt)*4
            ops += [f"v_cvt_pk_bf16_f32 v{r+2*k}, v{a}, v{a+1}", f"v_cvt_pk_bf16_f32 v{r+2*k+1}, v{a+2}, v{a+3}"]
        ops += flat([part_store(0, blk, r)])
        gpos = b + tl[1][0]*4 + tl[1][1]*2 + 1 + 5
        if gpos < N*40: slots[gpos].valu += ops
        else: post += ops
    side += ["L_gw:"] + spin("L_gw2", ldp, f"v_cmp_gt_u32 vcc, 1, v{V_CA}") + ["s_branch L_gw_ok"]
    return slots, post, late, side, ldp
def final(c, post, late, ldp):
    o = post + late + stamp(7, c.T) + ["s_waitcnt vmcnt(0)"] + flat([flag_store(S_FPW, 2)])
    o += spin("L_pw", ldp, f"v_cmp_gt_u32 vcc, 2, v{V_CA}") + stamp(8, c.T) + flat(part_loads(0, V_PI))
    o += ["s_waitcnt vmcnt(0)"] + part_sum(V_PI, 176, V_T)
    o += [f"v_fmac_f32 v{V_XF+e}, v{176+e}, v{V_G+e}" for e in range(20)]
    for nt in range(5):
        o += [f"v_cvt_pk_bf16_f32 v{V_XR+2*nt}, v{V_XF+4*nt}, v{V_XF+4*nt+1}", f"v_cvt_pk_bf16_f32 v{V_XR+2*nt+1}, v{V_XF+4*nt+2}, v{V_XF+4*nt+3}",
              f"buffer_store_dwordx2 {vr(V_XR+2*nt, 2)}, v{V_XO}, {sr(S_OUT)}, s{S_ROFF} offen offset:{32*nt}"]
    return o

def mk(lst, tag):
    out = []
    for x in lst:
        for y in (L(x) if isinstance(x, str) else [x]): y.tag = tag; out.append(y)
    return out
def flat(ops): return [y for pre, x in map(own, ops) for y in pre + [x]]

def gen(c):
    T = c.T; npre = 3
    h = [f"""s_cmp_ge_u32 s2, 256
s_cbranch_scc1 L_end
s_load_dwordx2 s[{S_T}:{S_T+1}], s[0:1], {A_X}
s_load_dwordx2 s[{S_WQ}:{S_WQ+1}], s[0:1], {A_WQ}
s_load_dwordx2 s[{S_WG}:{S_WG+1}], s[0:1], {A_WG}
s_load_dwordx2 s[{S_WU}:{S_WU+1}], s[0:1], {A_WU}
s_load_dwordx2 s[{S_WS}:{S_WS+1}], s[0:1], {A_WS}
s_load_dwordx2 s[{S_DBG}:{S_DBG+1}], s[0:1], {A_DBG}
s_load_dwordx2 s[{S_KSRD}:{S_KSRD+1}], s[0:1], {A_K}
s_load_dwordx2 s[{S_VSRD}:{S_VSRD+1}], s[0:1], {A_V}"""] + stamp(0, T)
    h += [f"""v_and_b32 v1, 63, v0
v_lshrrev_b32 v2, 6, v0
v_lshlrev_b32 v{V_L16}, 4, v1
v_readfirstlane_b32 s{S_WAVE}, v2
s_and_b32 s{S_HEAD}, s2, 7
s_lshl_b32 s{S_HEAD}, s{S_HEAD}, 2
s_bfe_u32 s{S_QB}, s2, 0x20003
s_add_u32 s{S_HEAD}, s{S_HEAD}, s{S_QB}
s_lshr_b32 s{S_QB}, s2, 5"""] + setup_dma()
    h += [f"""s_lshl_b32 s{S_LDSW}, s{S_WAVE}, 12
s_lshl_b32 s{S_QOFF}, s{S_WAVE}, 17
s_lshl_b32 s3, s{S_HEAD}, 8
s_add_u32 s{S_QOFF}, s{S_QOFF}, s3
s_mul_i32 s{S_GOFF}, s{S_WAVE}, {16*3456}
s_lshl_b32 s3, s{S_HEAD}, 7
s_add_u32 s{S_GOFF}, s{S_GOFF}, s3
v_mov_b32 v{V_Z}, 0
v_cmp_eq_u32 vcc, 0, v0
v_mov_b32 v2, 0x10000000
v_mov_b32 v{V_K1}, 1
v_cndmask_b32 v{V_ONE0}, v2, v{V_Z}, vcc
v_cmp_eq_u32 vcc, 0, v1
s_mov_b32 s{S_MODE}, -1
v_cndmask_b32 v{V_ONEW}, v2, v{V_Z}, vcc
s_waitcnt lgkmcnt(0)"""]
    h += srd(S_T, S_T, 2048*1280) + srd(S_WQ, S_WQ, 640*8192) + srd(S_WG, S_WG, 640*3456) + srd(S_WU, S_WU, 640*3456) + srd(S_WS, S_WS, WS_END)
    h += [f"s_cmp_lt_u32 s{S_HEAD}, 27", f"s_cselect_b32 s{S_WG+2}, s{S_WG+2}, 0", f"s_cselect_b32 s{S_WU+2}, s{S_WU+2}, 0",
          f"s_cmp_lt_u32 s{S_WAVE}, 2", f"s_cselect_b32 s{S_T+2}, s{S_T+2}, 0"]
    h += ln_loads() + flat(dma_w(0, n) for n in range(8))
    h += srd(S_DBG, S_DBG, 256) + srd(S_HS, S_WS, SZ_H, WS_H) + srd(S_WP, S_WS, SZ_WP, WS_WP) + srd(S_KSRD, S_KSRD, 1 << 24) + srd(S_VSRD, S_VSRD, 1 << 24)
    h += [f"s_lshr_b32 s{S_T2}, s{S_HEAD}, 3", f"s_and_b32 s{S_CNT}, s{S_HEAD}, 7",
          f"s_lshl_b32 s3, s{S_QB}, 2", f"s_add_u32 s3, s3, s{S_T2}", "s_lshl_b32 s3, s3, 3", f"s_add_u32 s3, s3, s{S_WAVE}", "s_lshl_b32 s3, s3, 3",
          f"s_add_u32 s3, s3, s{S_CNT}", "s_lshl_b32 s3, s3, 2", f"s_add_u32 s{S_FOW}, s3, {WS_FO}",
          f"s_lshl_b32 s3, s{S_QB}, 3", f"s_add_u32 s3, s3, s{S_CNT}", "s_lshl_b32 s3, s3, 4", f"s_add_u32 s3, s3, s{S_WAVE}", "s_lshl_b32 s3, s3, 2",
          f"s_add_u32 s3, s3, s{S_T2}", "s_lshl_b32 s3, s3, 2", f"s_add_u32 s{S_FPW}, s3, {WS_FP}"]
    h += [X(f"buffer_store_dword v{V_Z}, v{V_ONEW}, {sr(S_WS)}, s{r} offen sc1", label="xn") for r in (S_FOW, S_FPW)]
    h += setup_rest()
    h += [f"s_cmp_ge_u32 s{S_WAVE}, 2", "s_cbranch_scc1 L_noln"] + ln_compute() + ["L_noln:"]
    h += flat(dma_w(1, n) for n in range(8))
    h += [f"""s_load_dwordx2 s[{S_T}:{S_T+1}], s[0:1], {A_WD}
s_load_dwordx2 s[{S_T3}:{S_T3+1}], s[0:1], {A_WO}
s_lshl_b32 s3, s{S_QB}, 2
s_add_u32 s3, s3, s{S_WAVE}
s_mul_i32 s{S_XOFF}, s3, {4*20480}
s_lshl_b32 s{S_HOFF}, s3, 13
s_add_u32 s{S_OOFF}, s{S_HOFF}, {WS_O}
s_lshl_b32 s3, s{S_HEAD}, 18
s_add_u32 s{S_HOFF}, s{S_HOFF}, s3
s_lshl_b32 s3, s{S_HEAD}, 19
s_add_u32 s{S_OOFF}, s{S_OOFF}, s3
s_add_u32 s{S_KOFF}, s3, s{S_LDSW}
s_mov_b32 s{S_VOFF}, s{S_KOFF}
s_lshl_b32 s3, s{S_QB}, 5
s_waitcnt vmcnt(8)
s_barrier""", X(f"buffer_atomic_add v{V_K1}, v{V_ONE0}, {sr(S_DBG)}, s3 offen", label="sig")]
    h += flat(dma_w(2, n) for n in range(8))
    h += [f"""s_lshl_b32 s{S_PDST}, s2, 2
s_add_u32 s{S_PDST}, s{S_PDST}, s{S_WAVE}
s_mul_hi_u32 s{S_CNT}, s{S_PDST}, {(1 << 32) // 5 + 1}
s_mul_i32 s{S_T2}, s{S_CNT}, 5
s_sub_u32 s{S_T2}, s{S_PDST}, s{S_T2}
s_lshl_b32 s{S_PDST}, s{S_PDST}, 13
s_lshl_b32 s{S_T2}, s{S_T2}, 8
s_mov_b32 s{S_T+2}, {1728*1280}
s_waitcnt lgkmcnt(0)
s_cmp_ge_u32 s{S_CNT}, 54
s_cselect_b32 s{S_T}, s{S_T3}, s{S_T}
s_cselect_b32 s{S_T+1}, s{S_T3+1}, s{S_T+1}
s_cselect_b32 s{S_T+2}, {4096*1280}, s{S_T+2}
s_cselect_b32 s{S_PSRC}, 54, 0
s_sub_u32 s{S_CNT}, s{S_CNT}, s{S_PSRC}
s_mul_i32 s{S_PSRC}, s{S_CNT}, 40960
s_add_u32 s{S_PSRC}, s{S_PSRC}, s{S_T2}
s_lshl_b32 s{S_T3}, s{S_WAVE}, 13
s_add_u32 s{S_T3+1}, s{S_T3}, 65536
s_cmp_eq_u32 s{S_WAVE}, 3
s_cbranch_scc1 L_lw
L_lw_ok:"""]
    h += ["s_barrier"] + stamp(1, T) + flat(ld_x(0, n) for n in range(8)) + flat(ld_x(1, n) for n in range(8))
    h += [rd_w(0, ti, x >> 1, x & 1) for ti in range(2) for x in range(4)] + [f"v_mov_b32 v{V_LS+i}, 0" for i in range(4)]
    h += ["s_waitcnt vmcnt(@X0)", "s_waitcnt lgkmcnt(?)"]
    pslots = proj_slots(c, npre)
    for k, x in enumerate(tail_setup()): pslots[9*128 + 32 + k].pre.append(x)
    tr = mk(h, -50) + linear(pslots)
    tr += mk(stamp(2, T) + [f"s_load_dwordx2 s[{S_XSRD}:{S_XSRD+1}], s[0:1], {A_X}", f"s_load_dwordx2 s[{S_OUT}:{S_OUT+1}], s[0:1], {A_OUT}"] +
             [rd_k(0, 0, s) for s in range(4)] + proj_epilogue() + first_max() + srd(S_XSRD, S_XSRD, 2048*1280) + srd(S_OUT, S_OUT, 2048*1280) + stamp(3, T) + ["L_attn:"], -5)

    tslots, post, late, side, ldp = tail_slots(c)
    ldc = f"buffer_load_dword v{V_CA}, v{V_Z}, {sr(S_DBG)}, 0 offen offset:16 sc1"
    def inject(slots, base):
        slots[base[(0, 3)] + c.xpos[1]].extra.append(X(f"buffer_atomic_add v{V_K1}, v{V_ONE0}, {sr(S_DBG)}, 0 offen offset:16", label="sig"))
        for j in range(3, 29, 4): slots[base[(j, 0)] + c.xpos[0]].extra.append(X(ldc, label="cnt"))
        slots[base[(29, 0)]].pre += [f"v_cmp_gt_u32 vcc, 0x100, v{V_CA}", "s_nop 1", "s_cbranch_vccnz L_cw", "L_cw_ok:"]
        free = lambda j, i: sorted([base[(j, i)] + p for p in c.xpos + c.dma if not slots[base[(j, i)] + p].G])
        A = lambda st: [dma_a(st, p) for p in range(5)]
        B = lambda st: [ld_b(st, n) for n in range(4)]
        def place(ops, pos):
            assert len(ops) <= len(pos), (len(ops), len(pos))
            for op, g in zip(ops, pos):
                room = next(d for d in range(3) if d == 2 or slots[g - 1 - d].G)
                put_vmem(slots, g, op, back=(min(2, room), min(1, room)))
        place(A(0) + A(1), free(29, 0) + free(29, 1))
        place(B(0), free(29, 2) + free(29, 3)[:1])
        place(B(1) + A(2) + A(3) + B(2), free(29, 3) + free(30, 0) + free(30, 1) + free(30, 2) + free(30, 3)[:2])
        b = base[(30, 3)]
        place(A(4) + B(3), [g for g in sorted([b + p for p in c.xpos + c.dma + c.rpos]) if g > b + c.bar] + [base[(31, 0)] + 6, base[(31, 0)] + 7])
        b = base[(31, 0)]
        place(A(5), [b + 9, b + 10, b + 11, b + 16, b + 18])
        lf = l_finish(c)
        for k, x in enumerate(lf): slots[b + 20 + k*11 // len(lf)].valu.append(x)
        for i in range(1, 4):
            b = base[(31, i)]; ops = o_epilogue(i - 1)
            slots[b + 14].valu += ops[:21]
            for k, x in enumerate(ops[21:]): slots[b + 16 + k*16 // len(ops[21:])].valu.append(x)
    aslots, base = attn_slots(c, inject)
    tr += linear(aslots)
    mid = stamp(4, T) + ["s_waitcnt vmcnt(@A5|B0) lgkmcnt(0)", "s_barrier"] + [rd_a(0, nt, ks) for nt in range(4) for ks in range(2)]
    mid += flat(dma_a(6, p) for p in range(5)) + o_epilogue(3) + flat(dma_a(7, p) for p in range(5)) + ["s_waitcnt lgkmcnt(?)"]
    tr += mk(mid, 90) + linear(tslots) + mk(final(c, post, late, ldp), 200)
    if T: tr += mk(["s_waitcnt vmcnt(0)"] + stamp(9, T) + stamp_out(10, "L_end"), 200)
    tr = fix_hazards(resolve_waits(resolve_labels(tr)))
    errs = check_counters(tr) + check_hazards(tr) + check_lds(tr) + check_owner(tr)
    assert not errs, "\n".join(errs[:20])
    pre, body, post_ = roll(tr, 1, 4, 7)
    idx = [i for i, x in enumerate(body) if x.kind == "mfma"]
    body.insert(idx[-4] + 1, I(f"s_sub_u32 s{S_CNT}, s{S_CNT}, 1"))
    idx = [i for i, x in enumerate(body) if x.kind == "mfma"]
    body.insert(idx[-3] + 1, I(f"s_cmp_lg_u32 s{S_CNT}, 0"))
    assert not any(x.kind == "salu" for x in body[idx[-3] + 2:])
    side += ["L_cw:"] + spin("L_cw2", ldc, f"v_cmp_gt_u32 vcc, 0x100, v{V_CA}") + ["s_branch L_cw_ok"]
    side += ["L_lw:"] + spin("L_lw2", f"buffer_load_dword v{V_CA}, v{V_Z}, {sr(S_DBG)}, s3 offen sc1", f"v_cmp_gt_u32 vcc, 32, v{V_CA}") + ["s_branch L_lw_ok"]
    side = fix_hazards(mk(side + slow_path(c), 300))
    errs = check_counters(side) + check_lds(side) + check_owner(side)
    assert not errs, "\n".join(errs[:20])
    return f"{text(pre)}\n  s_mov_b32 s{S_CNT}, 7\n.p2align 6\nL_loop:\n{text(body)}\n  s_cbranch_scc1 L_loop\n{text(post_)}\nL_end:\n  s_endpgm\n{text(side)}"

NAME = "recurrent_scan__gqa_block_cached__glu_gated_bilinear__prompt"
def build(c):
    head = "\n".join(open(f"cdna_kernels/{NAME}.s.ref").read().split("\n")[:13])
    n = NAME + "_kernel"
    return (f'{head}\n; @launch grid=(256,1,1) block=(256,1,1) lds=163840\n.amdgcn_target "amdgcn-amd-amdhsa--gfx950"\n.text\n'
            f'.globl {n}\n.p2align 8\n.type {n},@function\n{n}:\n{gen(c)}\n.section .rodata,"a"\n.p2align 6\n{kd(n)}\n')
if __name__ == "__main__":
    open("f_t.s", "w").write(build(Cfg(T=True)))
    open("f.s", "w").write(build(Cfg()))
```
